```python
import torch

def _softmax(x, axis=-1):
    return torch.softmax(x, dim=axis)

def _gelu(x):
    return torch.nn.functional.gelu(x, approximate='tanh')

def _silu(x):
    return torch.nn.functional.silu(x)

def _sigmoid(x):
    return torch.sigmoid(x)

def _layernorm(x, axis=-1, eps=1e-05):
    m = x.mean(dim=axis, keepdim=True)
    v = x.var(dim=axis, keepdim=True, unbiased=False)
    return (x - m) / torch.sqrt(v + eps)

def _scatter_add(tgt, idx, src, axis=0):
    return tgt.clone().index_add_(axis, idx, src)

def _segment_sum(src, seg, n):
    out = torch.zeros((n,) + src.shape[1:], dtype=src.dtype)
    return out.index_add_(0, seg, src)

def _pad(x, pw):
    flat = tuple((v for pair in reversed(pw) for v in pair))
    return torch.nn.functional.pad(x, flat)
kernel_name = 'adaLN_cond__ssm_conv_h3__glu_gated_geglu__prompt'

def setup_inputs():

    _w = lambda a: (lambda t: t.to(torch.bfloat16) if t.is_floating_point() else t)(torch.as_tensor(a))

    def _A_setup():
        B, S, D = (1, 2048, 512)
        ks = 4
        return {'q': _w((lambda *s: torch.randn(*s, dtype=torch.bfloat16) * 0.05)(B, S, D)), 'k': _w((lambda *s: torch.randn(*s, dtype=torch.bfloat16) * 1.6)(B, S, D)), 'v': _w((lambda *s: torch.randn(*s, dtype=torch.bfloat16) * 1.6)(B, S, D)), 'shift_k': _w((lambda *s: torch.randn(*s, dtype=torch.bfloat16) * 1.6)(D, ks) * 0.5), 'ssm_k': _w((lambda *s: torch.randn(*s, dtype=torch.bfloat16) * 1.6)(D, S) * (1.0 / S ** 0.5)), 'ssm_D': _w((lambda *s: torch.randn(*s, dtype=torch.bfloat16) * 1.6)(D))}
    _A_in = _A_setup()

    def _B_setup():
        B, S, Dm, Df = (1, 2048, 512, 1792)
        return {'x': _w((lambda *s: torch.randn(*s, dtype=torch.bfloat16) * 0.05)(B, S, Dm)), 'w_gate': _w((lambda *s: torch.randn(*s, dtype=torch.bfloat16) * 3.2)(Dm, Df) * Dm ** (-0.5)), 'w_up': _w((lambda *s: torch.randn(*s, dtype=torch.bfloat16) * 3.2)(Dm, Df) * Dm ** (-0.5)), 'w_down': _w((lambda *s: torch.randn(*s, dtype=torch.bfloat16) * 3.2)(Df, Dm) * Df ** (-0.5))}
    _B_in = _B_setup()
    return {'A_q': _A_in['q'], 'A_k': _A_in['k'], 'A_v': _A_in['v'], 'A_shift_k': _A_in['shift_k'], 'A_ssm_k': _A_in['ssm_k'], 'A_ssm_D': _A_in['ssm_D'], 'B_x': _B_in['x'], 'B_w_gate': _B_in['w_gate'], 'B_w_up': _B_in['w_up'], 'B_w_down': _B_in['w_down'], 'c': _w((lambda *s: torch.randn(*s, dtype=torch.bfloat16) * 0.1)(1, 512) * 8.0), 'w_mod': _w((lambda *s: torch.randn(*s, dtype=torch.bfloat16) * 0.1)(512, 6 * 512) * 512 ** (-0.5) * 8.0)}

def reference(A_q, A_k, A_v, A_shift_k, A_ssm_k, A_ssm_D, B_x, B_w_gate, B_w_up, B_w_down, c, w_mod):

    def _A_ref(q, k, v, shift_k, ssm_k, ssm_D):
        B, S, D = q.shape
        ks = shift_k.shape[-1]
        k_pad = _pad(k, ((0, 0), (ks - 1, 0), (0, 0)))
        k_shift = torch.zeros_like(k)
        for t in range(ks):
            k_shift = k_shift + k_pad[:, t:t + S, :] * shift_k[:, ks - 1 - t][None, None, :]
        kv = k_shift * v
        L = 2 * S
        kv_pad = _pad(kv, ((0, 0), (0, S), (0, 0)))
        kf_pad = _pad(ssm_k, ((0, 0), (0, S)))
        kv_f = (lambda x, axes=(-2, -1): torch.fft.rfft2(x.float(), dim=axes))(kv_pad[:, None, :, :], axes=(1, 2))
        kf_f = (lambda x, axes=(-2, -1): torch.fft.rfft2(x.float(), dim=axes))(kf_pad[:, None, :], axes=(1, 2))
        kf_f = (lambda x, *d: x.permute(*d))(kf_f, 1, 2, 0)
        y_f = kv_f * kf_f[None, :, :, :]
        y = (lambda x, s, axes=(-2, -1): torch.fft.irfft2(x, s=s, dim=axes).to(torch.bfloat16))(y_f, (1, L), axes=(1, 2))[:, 0, :S, :]
        y = y + kv * ssm_D[None, None, :]
        return q * y

    def _B_ref(x, w_gate, w_up, w_down):
        g = torch.einsum('bsd,df->bsf', x, w_gate)
        u = torch.einsum('bsd,df->bsf', x, w_up)
        h = _gelu(g) * u
        return torch.einsum('bsf,fd->bsd', h, w_down)
    x = A_q
    mod = (_silu(c) @ w_mod).reshape(c.shape[0], 6, 1, -1)
    sa, ca, ga, sb, cb, gb = (mod[:, 0].clone(), mod[:, 1].clone(), mod[:, 2].clone(), mod[:, 3].clone(), mod[:, 4].clone(), mod[:, 5].clone())
    h = _layernorm(x, axis=-1) * (1 + ca) + sa
    x = x + ga * _A_ref(h, A_k, A_v, A_shift_k, A_ssm_k, A_ssm_D)
    h = _layernorm(x, axis=-1) * (1 + cb) + sb
    x = x + gb * _B_ref(h, B_w_gate, B_w_up, B_w_down)
    return x
```

```python
import re

TRANS = ("v_exp_f32", "v_log_f32", "v_rcp_f32", "v_rsq_f32", "v_sqrt_f32", "v_sin_f32", "v_cos_f32")
REG = re.compile(r"\b([vs])(\d+)\b|\b([vs])\[(\d+):(\d+)\]|\b(vcc|exec|m0)\b")


def regs_of(op):
    out = set()
    for m in REG.finditer(op):
        if m.group(1):
            out.add((m.group(1), int(m.group(2))))
        elif m.group(3):
            for i in range(int(m.group(4)), int(m.group(5)) + 1):
                out.add((m.group(3), i))
        else:
            out.add(("s", m.group(6)))
    return out


class Ins:
    def __init__(self, text):
        self.text = text
        body = text.split(";")[0].strip()
        self.is_label = body.endswith(":")
        self.is_dir = body.startswith(".") and not self.is_label
        self.real = bool(body) and not self.is_label and not self.is_dir
        self.defs, self.uses = set(), set()
        self.kind = None
        self.srcc = set()
        self.ab = set()
        self.wide_data = set()
        self.states = 1
        if not self.real:
            return
        parts = body.split(None, 1)
        self.mn = mn = parts[0]
        rest = parts[1] if len(parts) > 1 else ""
        ops = [o.strip() for o in re.split(r",(?![^\[]*\])", rest)]
        self.ops = ops
        r = [regs_of(o) for o in ops]
        allr = set().union(*r) if r else set()
        self.dpp = "_dpp" in mn
        if mn == "s_nop":
            self.kind = "nop"
            self.states = int(ops[0]) + 1
        elif mn.startswith("v_mfma"):
            self.kind = "mfma"
            self.defs = r[0]
            self.ab = r[1] | r[2]
            self.srcc = r[3]
            self.uses = self.ab | self.srcc
            self.passes = 8 if "32x32" in mn else 4
        elif mn.startswith("v_"):
            self.kind = "valu"
            if mn.startswith(("v_swap", "v_permlane")):
                self.defs = r[0] | r[1]
                self.uses = r[0] | r[1]
            else:
                self.defs = set(r[0])
                self.uses = set().union(*r[1:]) if len(r) > 1 else set()
                if mn.startswith(("v_fmac", "v_pk_fmac", "v_dot2c", "v_writelane")) or self.dpp:
                    self.uses |= r[0]
                if "_co_" in mn:
                    self.defs |= r[1]
            self.trans = mn.startswith(TRANS)
        elif mn.startswith(("buffer_", "global_")):
            self.kind = "vmem"
            self.lds = mn.startswith("global_load_lds") or bool(re.search(r"\blds\b", rest))
            if mn.startswith(("buffer_wbl2", "buffer_inv")):
                pass
            elif self.lds:
                self.uses = allr | {("s", "m0")}
            elif "load" in mn:
                self.defs = r[0]
                self.uses = set().union(*r[1:])
            else:
                self.uses = allr
                if re.search(r"dwordx[34]", mn):
                    self.wide_data = r[0] if mn.startswith("buffer_") else r[1]
        elif mn.startswith("ds_"):
            self.kind = "ds"
            if "read" in mn or "rtn" in mn or "permute" in mn or "swizzle" in mn:
                self.defs = r[0]
                self.uses = set().union(*r[1:])
            else:
                self.uses = allr
        elif mn.startswith("s_"):
            self.kind = "salu"
            if mn.startswith(("s_cmp", "s_bitcmp", "s_cbranch", "s_branch", "s_waitcnt", "s_barrier", "s_endpgm", "s_sleep", "s_setprio")):
                self.uses = allr
            else:
                self.defs = set(r[0]) if r else set()
                self.uses = set().union(*r[1:]) if len(r) > 1 else set()
        else:
            raise ValueError("unknown instruction: " + text)


def vonly(s):
    return {x for x in s if x[0] == "v"}


def sonly(s):
    return {x for x in s if x[0] == "s"}


def need(p, c):
    n = 0
    if p.kind == "valu":
        pv, ps = vonly(p.defs), sonly(p.defs)
        if c.kind == "mfma" and pv & c.uses:
            n = max(n, 2)
        if c.kind == "valu":
            if pv & c.uses:
                if p.trans:
                    n = max(n, 1)
                if c.dpp or c.mn.startswith("v_permlane"):
                    n = max(n, 2)
                if c.mn.startswith(("v_readlane", "v_readfirstlane")):
                    n = max(n, 1)
            if ps & c.uses:
                n = max(n, 4 if c.mn.startswith(("v_readlane", "v_writelane")) else 2)
            if ("s", "vcc") in ps and c.mn.startswith("v_cndmask"):
                n = max(n, 2)
        if c.kind == "vmem" and ps & c.uses:
            n = max(n, 5)
        if c.kind == "salu" and ps & c.uses:
            n = max(n, 1)
    elif p.kind == "mfma":
        big = 12 if p.passes == 8 else 8
        if c.kind == "mfma":
            if p.defs & c.ab:
                n = max(n, big)
            if p.defs & c.srcc and p.defs != c.srcc:
                n = max(n, big - 2)
            if p.defs & c.defs and not (p.defs & c.srcc):
                n = max(n, big)
        elif c.kind in ("valu", "vmem", "ds"):
            if p.defs & (c.uses | c.defs):
                n = max(n, big)
            if c.kind == "valu" and p.srcc & c.defs:
                n = max(n, 7 if p.passes == 8 else 3)
    elif p.kind == "salu":
        if ("s", "m0") in p.defs and c.kind == "vmem" and c.lds:
            n = max(n, 1)
    elif p.kind == "vmem":
        if p.wide_data & c.defs:
            n = max(n, 2 if c.kind in ("valu", "mfma") else 1)
    return n


class Asm:
    def __init__(self):
        self.lines = []
        self.nlabel = 0

    def __call__(self, text):
        for ln in text.split("\n"):
            ln = ln.strip()
            if ln:
                self.lines.append(ln)

    def label(self, base="L"):
        self.nlabel += 1
        return f"{base}_{self.nlabel}"

    def finish(self):
        ins = [Ins(t) for t in self.lines]
        out = []
        window = []
        pending = {}
        seen = set()
        for i in ins:
            if i.is_label:
                name = i.text.split(":")[0]
                seen.add(name)
                extra = pending.pop(name, [])
                out.append(i)
                merged = {}
                for w in [window] + extra:
                    for p, d in w:
                        merged[id(p)] = (p, min(d, merged.get(id(p), (p, 99))[1]))
                window = list(merged.values())
                continue
            if not i.real:
                out.append(i)
                continue
            pad = 0
            for p, d in window:
                pad = max(pad, need(p, i) - d)
            if pad > 0:
                nop = Ins(f"s_nop {pad - 1}")
                out.append(nop)
                window = [(p, d + pad) for p, d in window]
            out.append(i)
            window = [(p, d + i.states) for p, d in window if d + i.states < 14]
            window.append((i, 0))
            if i.mn.startswith(("s_cbranch", "s_branch")):
                tgt = i.ops[0]
                if tgt not in seen:
                    pending.setdefault(tgt, []).append(list(window))
                if i.mn == "s_branch":
                    window = []
            if i.mn == "s_endpgm":
                window = []
        res = []
        for i in out:
            res.append(i.text if (i.is_label or i.is_dir) else "    " + i.text)
        return "\n".join(res) + "\n"
```

```python
import sys
from asmlib import Asm

NAME = "adaLN_cond__ssm_conv_h3__glu_gated_geglu__prompt"

FL1, FL3, FL4 = 0x1000, 0x1400, 0x1800
MODF = 0x2000
MODP = 0x10000
R1 = 0x100000
Z = 0x300000
ZG = 0xE0000
STAMP = 0xA00000
WS_BYTES = 0x1000000

L_G = 0
L_U = 57344 + 16
L_KT = 0
L_VT = 9 * 1040
L_KVR = 114944
L_PART = 124160
L_MOD = 156928
LDS_BYTES = 163840
KCH = 8320
KE, KO = 32, 32 + 4096 + 64
SPIN = 1 << 16

sQ, sK, sV, sSH, sSK, sSD, sWG, sWU, sWD, sC, sWM, sOUT, sDBG, sWS = (
    4, 6, 8, 10, 12, 14, 18, 20, 22, 24, 26, 28, 30, 32)
sXG, sJ, sW, sP, sT, sFAST, sID = 34, 35, 36, 37, 38, 40, 41
sDA, sDB = 42, 43
rK, rV, rG, rU, rD, rWS, rSK = 44, 48, 52, 56, 60, 64, 68
sA, sB, sCn, sE, sF, sGt = 72, 73, 74, 75, 76, 77
sM = 78
sST = 80


def sp(n):
    return f"s[{n}:{n + 1}]"


def srd(n):
    return f"s[{n}:{n + 3}]"


def vr(n, k):
    return f"v[{n}:{n + k - 1}]"


class Gen:
    def __init__(self, stop=None, stamps=False, force_slow=False):
        self.a = Asm()
        self.stop = stop
        self.stamps = stamps
        self.force_slow = force_slow
        self.nst = 0

    def stamp(self):
        if not self.stamps:
            return
        a = self.a
        a(f"s_memrealtime {sp(sM)}")
        a("s_waitcnt lgkmcnt(0)")
        a(f"s_mov_b32 s{sST + self.nst}, s{sM}")
        self.nst += 1

    def mk_srd(self, r, p, nbytes):
        self.a(f"s_mov_b64 {sp(r)}, {sp(p)}\ns_mov_b32 s{r + 2}, {nbytes}\ns_mov_b32 s{r + 3}, 0x20000")

    def local_stores(self, lines):
        a = self.a
        ls, le = a.label("slow"), a.label("join")
        a(f"s_cmp_eq_u32 s{sFAST}, 0\ns_cbranch_scc1 {ls}")
        for ln in lines:
            a(ln)
        a(f"s_branch {le}\n{ls}:")
        for ln in lines:
            a(ln + " sc1")
        a(f"{le}:")

    def publish_and_wait(self, fl, between=None):
        a = self.a
        a("s_waitcnt vmcnt(0) lgkmcnt(0)\ns_barrier")
        l1, l2, lp = a.label("nf"), a.label("np"), a.label("poll")
        a(f"s_lshl_b32 s{sA}, s{sXG}, 7\ns_add_u32 s{sA}, s{sA}, {fl}")
        a(f"s_cmp_lg_u32 s{sW}, 0\ns_cbranch_scc1 {l1}")
        a(f"s_lshl_b32 s{sB}, s{sJ}, 2\nv_mov_b32 v8, s{sB}\nv_mov_b32 v9, s{sT}\ns_mov_b64 exec, 1")
        self.local_stores([f"buffer_store_dword v9, v8, {srd(rWS)}, s{sA} offen"])
        a(f"s_mov_b64 exec, -1\n{l1}:")
        if between:
            between()
            a(f"s_lshl_b32 s{sA}, s{sXG}, 7\ns_add_u32 s{sA}, s{sA}, {fl}")
        a(f"s_cmp_lg_u32 s{sW}, 7\ns_cbranch_scc1 {l2}")
        a(f"v_and_b32 v8, 31, v1\nv_lshlrev_b32 v8, 2, v8\ns_mov_b32 s{sCn}, 0\n{lp}:")
        a(f"buffer_load_dword v9, v8, {srd(rWS)}, s{sA} offen sc1\ns_add_u32 s{sCn}, s{sCn}, 1\ns_waitcnt vmcnt(0)")
        a(f"v_cmp_ne_u32 vcc, s{sT}, v9\ns_cbranch_vccz {l2}")
        a(f"s_cmp_lt_u32 s{sCn}, {SPIN}\ns_cbranch_scc1 {lp}\n{l2}:")
        a("s_waitcnt lgkmcnt(0)\ns_barrier")

    def tagged_loads(self, loads):
        a = self.a
        lp, ld = a.label("tag"), a.label("tagok")
        a(f"s_mov_b32 s{sCn}, 0\n{lp}:")
        for ins, _, _ in loads:
            a(ins)
        a(f"s_add_u32 s{sCn}, s{sCn}, 1\ns_waitcnt vmcnt(0)")
        for i, (_, tg, wide) in enumerate(loads):
            dst = "vcc" if i == 0 else sp(sM)
            if wide:
                a(f"v_cmp_ne_u64 {dst}, {sp(sT)}, {tg}")
            else:
                a(f"v_cmp_ne_u32 {dst}, s{sT}, {tg}")
            if i:
                a(f"s_or_b64 vcc, vcc, {sp(sM)}")
        a(f"s_cmp_eq_u64 vcc, 0\ns_cbranch_scc1 {ld}")
        a(f"s_sleep 2\ns_cmp_lt_u32 s{sCn}, {SPIN}\ns_cbranch_scc1 {lp}\n{ld}:")

    def wave_sum(self, regs, tmp):
        a = self.a
        for sh in (8, 4, 2, 1):
            for r in regs:
                a(f"v_add_f32_dpp v{r}, v{r}, v{r} row_ror:{sh} row_mask:0xf bank_mask:0xf")
        for op in ("v_permlane16_swap_b32", "v_permlane32_swap_b32"):
            for i, r in enumerate(regs):
                a(f"v_mov_b32 v{tmp + i}, v{r}")
            for i, r in enumerate(regs):
                a(f"{op} v{r}, v{tmp + i}")
            for i, r in enumerate(regs):
                a(f"v_add_f32 v{r}, v{r}, v{tmp + i}")

    def unpack8(self, dst, src):
        for i in range(4):
            self.a(f"v_lshlrev_b32 v{dst + 2 * i}, 16, v{src + i}\nv_and_b32 v{dst + 2 * i + 1}, 0xffff0000, v{src + i}")

    def ln_stats(self, x, mu, rs, tmp):
        a = self.a
        a(f"v_pk_add_f32 {vr(tmp, 2)}, {vr(x, 2)}, {vr(x + 2, 2)}")
        a(f"v_pk_mul_f32 {vr(tmp + 2, 2)}, {vr(x, 2)}, {vr(x, 2)}")
        a(f"v_pk_add_f32 {vr(tmp, 2)}, {vr(tmp, 2)}, {vr(x + 4, 2)}")
        a(f"v_pk_fma_f32 {vr(tmp + 2, 2)}, {vr(x + 2, 2)}, {vr(x + 2, 2)}, {vr(tmp + 2, 2)}")
        a(f"v_pk_add_f32 {vr(tmp, 2)}, {vr(tmp, 2)}, {vr(x + 6, 2)}")
        a(f"v_pk_fma_f32 {vr(tmp + 2, 2)}, {vr(x + 4, 2)}, {vr(x + 4, 2)}, {vr(tmp + 2, 2)}")
        a(f"v_add_f32 v{mu}, v{tmp}, v{tmp + 1}")
        a(f"v_pk_fma_f32 {vr(tmp + 2, 2)}, {vr(x + 6, 2)}, {vr(x + 6, 2)}, {vr(tmp + 2, 2)}")
        a(f"v_add_f32 v{rs}, v{tmp + 2}, v{tmp + 3}")
        self.wave_sum([mu, rs], tmp)
        a(f"v_mul_f32 v{mu}, 0x3b000000, v{mu}")
        a(f"v_mul_f32 v{rs}, 0x3b000000, v{rs}")
        a(f"v_fma_f32 v{rs}, -v{mu}, v{mu}, v{rs}")
        a(f"v_max_f32 v{rs}, 0, v{rs}")
        a(f"v_add_f32 v{rs}, 0x3727c5ac, v{rs}")
        a(f"v_rsq_f32 v{rs}, v{rs}")

    def w1_offsets(self, base):
        a = self.a
        a(f"s_movk_i32 s{sA}, 3472")
        for i in range(7):
            a(f"v_add_u32 v8, {64 * i}, v1\nv_mul_u32_u24 v9, 9363, v8\nv_lshrrev_b32 v9, 16, v9\nv_lshlrev_b32 v8, 4, v8")
            a(f"v_mad_u32_u24 v{base + i}, v9, s{sA}, v8")

    def w1_dma(self, base, sblk, r, lds):
        a = self.a
        a(f"s_mul_i32 s{sA}, s{sblk}, {64 * 3584}\ns_mul_i32 s{sB}, s{sJ}, 112\ns_add_u32 s{sA}, s{sA}, s{sB}")
        a(f"s_mul_i32 s{sB}, s{sblk}, 7168\ns_add_u32 s{sB}, s{sB}, {lds}")
        for i in range(7):
            a(f"s_add_u32 m0, s{sB}, {1024 * i}")
            a(f"buffer_load_dwordx4 v{base + i}, {srd(r)}, s{sA} offen lds")

    def end(self):
        a = self.a
        if self.stamps:
            l = a.label("nost")
            a(f"s_and_b32 s{sA}, s{sW}, 3\ns_cmp_lg_u32 s{sA}, 0\ns_cbranch_scc1 {l}")
            a(f"s_lshl_b32 s{sA}, s2, 1\ns_lshr_b32 s{sB}, s{sW}, 2\ns_add_u32 s{sA}, s{sA}, s{sB}\ns_lshl_b32 s{sA}, s{sA}, 7\ns_add_u32 s{sA}, s{sA}, {STAMP}")
            a("v_mov_b32 v8, 0\ns_mov_b64 exec, 1")
            for i in range(self.nst):
                a(f"v_mov_b32 v9, s{sST + i}\nbuffer_store_dword v9, v8, {srd(rWS)}, s{sA} offen offset:{4 * i}")
            a(f"v_mov_b32 v9, s{sFAST}\nbuffer_store_dword v9, v8, {srd(rWS)}, s{sA} offen offset:124")
            a(f"{l}:")
        a("s_endpgm")

    def maybe_stop(self, name):
        if self.stop == name:
            self.a("s_waitcnt vmcnt(0) lgkmcnt(0)")
            self.bump_epoch()
            self.end()
            return True
        return False

    def bump_epoch(self):
        a = self.a
        l = a.label("noep")
        a(f"s_or_b32 s{sA}, s2, s{sW}\ns_cmp_lg_u32 s{sA}, 0\ns_cbranch_scc1 {l}")
        a(f"v_mov_b32 v8, 0\nv_mov_b32 v9, s{sT}\ns_mov_b64 exec, 1")
        a(f"buffer_store_dword v9, v8, {srd(rWS)}, 0 offen sc1\ns_mov_b64 exec, -1\n{l}:")

    def phase0(self):
        a = self.a
        a("s_load_dwordx16 s[4:19], s[0:1], 0\ns_load_dwordx8 s[20:27], s[0:1], 64")
        a("s_load_dwordx4 s[28:31], s[0:1], 96\ns_load_dwordx2 s[32:33], s[0:1], 112")
        a("s_cmp_ge_u32 s2, 256\ns_cbranch_scc1 L_exit")
        a("v_lshrrev_b32 v8, 6, v0\nv_and_b32 v1, 63, v0")
        a(f"s_and_b32 s{sXG}, s2, 7\ns_lshr_b32 s{sJ}, s2, 3\nv_readfirstlane_b32 s{sW}, v8")
        a(f"s_lshl_b32 s{sP}, s{sXG}, 5\ns_add_u32 s{sP}, s{sP}, s{sJ}")
        a(f"s_getreg_b32 s{sID}, hwreg(HW_REG_XCC_ID, 0, 4)\ns_add_u32 s{sID}, s{sID}, 1")
        a("v_lshrrev_b32 v10, 3, v1\nv_and_b32 v11, 7, v1\nv_lshlrev_b32 v12, 10, v10\nv_lshl_add_u32 v12, v11, 4, v12")
        a(f"s_lshl_b32 s{sE}, s{sJ}, 3\ns_add_u32 s{sE}, s{sE}, s{sW}\ns_lshl_b32 s{sE}, s{sE}, 13\ns_lshl_b32 s{sA}, s{sXG}, 7\ns_add_u32 s{sE}, s{sE}, s{sA}")
        a(f"s_mul_i32 s{sF}, s{sW}, 1040")
        a("s_waitcnt lgkmcnt(0)")
        self.stamp()
        self.mk_srd(rK, sK, 2097152)
        self.mk_srd(rV, sV, 2097152)
        a(f"s_add_u32 m0, s{sF}, {L_KT + 1040}\nbuffer_load_dwordx4 v12, {srd(rK)}, s{sE} offen lds")
        a(f"s_add_u32 m0, s{sF}, {L_VT}\nbuffer_load_dwordx4 v12, {srd(rV)}, s{sE} offen lds")
        a(f"s_load_dword s{sT}, {sp(sWS)}, 0")
        a(f"s_lshl_b32 s{sA}, s{sP}, 2\ns_load_dword s{sDA}, {sp(sSD)}, s{sA}")
        l0 = a.label("nw0")
        a(f"s_cmp_lg_u32 s{sW}, 0\ns_cbranch_scc1 {l0}")
        a(f"s_sub_u32 s{sA}, s{sE}, 8192\nv_add_u32 v13, s{sA}, v12\ns_mov_b32 m0, {L_KT}")
        a(f"v_mov_b32 v8, s{sP}\nv_mov_b32 v9, s{sID}")
        a(f"s_mov_b32 exec_lo, 0\ns_mov_b32 exec_hi, 0xffffff00\nbuffer_load_dwordx4 v13, {srd(rK)}, 0 offen lds")
        a(f"s_mov_b64 exec, 1\nglobal_store_byte v8, v9, {sp(sDBG)}\ns_mov_b64 exec, -1\n{l0}:")
        a(f"s_lshl_b32 s{sA}, s{sXG}, 3\ns_add_u32 s{sA}, s{sA}, s{sW}\ns_lshl_b32 s{sA}, s{sA}, 6")
        a(f"v_lshl_add_u32 v13, v10, 3, s{sA}\nglobal_load_dwordx2 v[30:31], v13, {sp(sSH)}")
        self.mk_srd(rSK, sSK, 2097152)
        self.mk_srd(rWS, sWS, WS_BYTES)
        a(f"s_lshl_b32 s{sA}, s{sP}, 13\nv_lshl_add_u32 v13, v0, 4, s{sA}\nv_add_u32 v14, -4, v13")
        a(f"buffer_load_dwordx4 v[16:19], v13, {srd(rSK)}, 0 offen\nbuffer_load_dword v20, v14, {srd(rSK)}, 0 offen")
        a(f"s_add_u32 s{sA}, s{sA}, {R1}\nv_lshlrev_b32 v13, 4, v0\nbuffer_load_dwordx4 v[84:87], v13, {srd(rWS)}, s{sA} offen sc1")
        a(f"s_lshl_b32 s{sA}, s{sP}, 3\ns_add_u32 s{sA}, s{sA}, s{sW}\ns_lshl_b32 s{sA}, s{sA}, 10")
        a(f"v_lshl_add_u32 v15, v1, 4, s{sA}\nglobal_load_dwordx4 v[2:5], v15, {sp(sQ)}")
        lm, lj = a.label("wm"), a.label("wj")
        a(f"s_cmp_ge_u32 s{sW}, 2\ns_cbranch_scc1 {lm}")
        a(f"s_mul_i32 s{sA}, s{sP}, 3072\ns_add_u32 s{sA}, s{sA}, {MODP}\nv_min_u32 v13, 95, v0\nv_lshlrev_b32 v13, 5, v13")
        a(f"buffer_load_dword v80, v13, {srd(rWS)}, s{sA} offen sc1")
        a(f"s_lshl_b32 s{sA}, s{sXG}, 7\ns_add_u32 s{sA}, s{sA}, {FL1}\nv_and_b32 v13, 3, v1\nv_lshlrev_b32 v13, 10, v13")
        a(f"buffer_load_dword v81, v13, {srd(rWS)}, s{sA} offen sc1")
        a(f"s_getpc_b64 {sp(sM)}\nL_pc:\nv_lshlrev_b32 v13, 7, v0\nv_min_u32 v13, L_last-L_pc, v13\nglobal_load_dword v82, v13, {sp(sM)}")
        a(f"v_add_u32 v13, 16384, v13\nv_min_u32 v13, L_last-L_pc, v13\nglobal_load_dword v83, v13, {sp(sM)}")
        a(f"s_branch {lj}\n{lm}:")
        a(f"s_sub_u32 s{sA}, s{sW}, 2\ns_lshl_b32 s{sA}, s{sA}, 10\ns_lshl_b32 s{sB}, s{sXG}, 7\ns_add_u32 s{sA}, s{sA}, s{sB}")
        a(f"s_mul_i32 s{sB}, s{sJ}, {16 * 6144}\ns_add_u32 s{sA}, s{sA}, s{sB}")
        a(f"v_mul_u32_u24 v13, 6144, v10\nv_lshl_add_u32 v13, v11, 4, v13\nv_add_u32 v13, s{sA}, v13\nv_add_u32 v14, {8 * 6144}, v13")
        a(f"global_load_dwordx4 v[72:75], v13, {sp(sWM)}\nglobal_load_dwordx4 v[76:79], v14, {sp(sWM)}")
        a(f"s_lshl_b32 s{sA}, s{sJ}, 5\nv_lshl_add_u32 v13, v10, 1, s{sA}")
        a(f"global_load_ushort v80, v13, {sp(sC)}\nglobal_load_ushort v81, v13, {sp(sC)} offset:16")
        a(f"{lj}:")
        a(f"s_lshl_b32 s{sA}, s{sXG}, 5\nv_and_b32 v14, 31, v1\nv_add_u32 v14, s{sA}, v14\nglobal_load_ubyte v21, v14, {sp(sDBG)} sc1")
        a("v_mov_b32 v24, 0\nv_mov_b32 v25, 0\nv_mov_b32 v26, 0\nv_mov_b32 v27, 0")
        lz = a.label("nz")
        a(f"s_cmp_lg_u32 s{sW}, 1\ns_cbranch_scc1 {lz}")
        a(f"v_lshrrev_b32 v8, 5, v1\nv_and_b32 v9, 31, v1\nv_mul_u32_u24 v8, 4608, v8\nv_lshl_add_u32 v8, v9, 4, v8\nv_add_u32 v8, {L_KVR + 4096}, v8")
        a("ds_write_b128 v8, v[24:27]")
        a(f"v_and_b32 v8, 1, v1\nv_bfe_u32 v9, v1, 1, 1\nv_lshlrev_b32 v8, 4, v8\nv_mul_u32_u24 v9, {KO - KE}, v9\nv_add_u32 v8, v8, v9")
        a(f"v_bfe_u32 v9, v1, 2, 1\nv_mul_u32_u24 v9, {KCH}, v9\nv_add3_u32 v8, v8, v9, 0\nv_add_u32 v8, {L_PART}, v8")
        a(f"ds_write_b128 v8, v[24:27]\n{lz}:")
        for i in range(19):
            a(f"v_mov_b32 v{32 + i}, 0")
        a(f"s_lshl_b32 s{sA}, s{sW}, 4\nv_mul_u32_u24 v8, 1040, v11\nv_lshl_add_u32 v8, v10, 1, v8\nv_add_u32 v8, s{sA}, v8")
        a("s_waitcnt vmcnt(9) lgkmcnt(0)")
        a(f"s_mul_i32 s{sT}, s{sT}, 0x9E3779B1\ns_add_u32 s{sT}, s{sT}, 0x7F4A7C15\ns_mul_i32 s{sT + 1}, s{sT}, 0x85EBCA6B\ns_xor_b32 s{sT + 1}, s{sT + 1}, 0x5BD1E995")
        a(f"s_and_b32 s{sDB}, s{sDA}, 0xffff0000\ns_lshl_b32 s{sDA}, s{sDA}, 16")
        a("s_barrier")
        self.stamp()
        for i in range(3):
            a(f"ds_read_u16_d16_hi v{32 + i}, v8 offset:{L_KT + (5 + i) * 128}")
        for i in range(8):
            a(f"ds_read_u16_d16_hi v{35 + i}, v8 offset:{L_KT + 1040 + i * 128}")
        a("v_lshlrev_b32 v28, 16, v30\nv_and_b32 v29, 0xffff0000, v30\nv_lshlrev_b32 v30, 16, v31\nv_and_b32 v31, 0xffff0000, v31")
        a("s_waitcnt lgkmcnt(7)")
        for i in range(8):
            a(f"ds_read_u16_d16_hi v{43 + i}, v8 offset:{L_VT + i * 128}")
        a("s_waitcnt lgkmcnt(8)")
        for i in range(8):
            a(f"v_mul_f32 v{52 + i}, v28, v{35 + i}")
        for jj in (1, 2, 3):
            for i in range(8):
                a(f"v_fmac_f32 v{52 + i}, v{28 + jj}, v{35 + i - jj}")
        a("s_waitcnt lgkmcnt(0)")
        for i in range(8):
            a(f"v_mul_f32 v{52 + i}, v{52 + i}, v{43 + i}")
        for i in range(4):
            a(f"v_cvt_pk_bf16_f32 v{60 + i}, v{59 - 2 * i}, v{58 - 2 * i}")
        a(f"v_lshlrev_b32 v8, 12, v10\nv_lshlrev_b32 v9, 4, v11\nv_sub_u32 v8, v8, v9\nv_add_u32 v8, 112, v8")
        a(f"s_lshl_b32 s{sA}, s{sXG}, 3\ns_add_u32 s{sA}, s{sA}, s{sW}\ns_lshl_b32 s{sA}, s{sA}, 15\ns_lshl_b32 s{sB}, s{sJ}, 7")
        a(f"s_sub_u32 s{sA}, s{sA}, s{sB}\ns_add_u32 s{sE}, s{sA}, {R1 + 4096 - 128}")
        lp, ld = a.label("id"), a.label("iddone")
        a(f"s_mov_b32 s{sFAST}, 0\ns_mov_b32 s{sCn}, 0")
        if not self.force_slow:
            a(f"{lp}:\ns_waitcnt vmcnt(0)\nv_cmp_ne_u32 vcc, s{sID}, v21\ns_cmp_eq_u64 vcc, 0\ns_cselect_b32 s{sFAST}, 1, 0\ns_cbranch_scc1 {ld}")
            a(f"s_add_u32 s{sCn}, s{sCn}, 1\ns_cmp_ge_u32 s{sCn}, 6\ns_cbranch_scc1 {ld}")
            a(f"global_load_ubyte v21, v14, {sp(sDBG)} sc1\ns_branch {lp}\n{ld}:")
        else:
            a("s_waitcnt vmcnt(0)")
        self.local_stores([f"buffer_store_dwordx4 v[60:63], v8, {srd(rWS)}, s{sE} offen"])
        self.stamp()
        a("v_and_b32 v8, 255, v0\nv_cmp_ne_u32 vcc, 0, v8\nv_lshrrev_b32 v9, 8, v0\nv_cndmask_b32 v20, 0, v20, vcc")
        a(f"v_mul_u32_u24 v9, {KCH}, v9\nv_lshl_add_u32 v8, v8, 4, v9\nv_add_u32 v8, {L_PART}, v8")
        a("v_alignbit_b32 v24, v16, v20, 16\nv_alignbit_b32 v25, v17, v16, 16\nv_alignbit_b32 v26, v18, v17, 16\nv_alignbit_b32 v27, v19, v18, 16")
        a(f"ds_write_b128 v8, v[16:19] offset:{KE}\nds_write_b128 v8, v[24:27] offset:{KO}")

        def between():
            lm2 = a.label("nm")
            a(f"s_cmp_lt_u32 s{sW}, 2\ns_cbranch_scc1 {lm2}")
            for r in (80, 81):
                a(f"v_lshlrev_b32 v{r}, 16, v{r}\nv_mul_f32 v8, 0xbfb8aa3b, v{r}\nv_exp_f32 v8, v8\nv_add_f32 v8, 1.0, v8\nv_rcp_f32 v8, v8")
                a(f"v_mul_f32 v{r}, v{r}, v8\nv_cvt_pk_bf16_f32 v{r}, v{r}, v{r}\nv_lshlrev_b32 v{r}, 16, v{r}")
            self.unpack8(32, 72)
            self.unpack8(40, 76)
            for e in range(8):
                a(f"v_mul_f32 v{32 + e}, v80, v{32 + e}")
            for e in range(8):
                a(f"v_fmac_f32 v{32 + e}, v81, v{40 + e}")
            for e in range(4):
                a(f"v_permlane32_swap_b32 v{32 + e}, v{36 + e}")
            for e in range(4):
                a(f"v_add_f32 v{32 + e}, v{32 + e}, v{36 + e}")
            for e in range(2):
                a(f"v_permlane16_swap_b32 v{32 + e}, v{34 + e}")
            for e in range(2):
                a(f"v_add_f32 v{32 + e}, v{32 + e}, v{34 + e}")
            for e in range(2):
                a(f"v_add_f32_dpp v{32 + e}, v{32 + e}, v{32 + e} row_ror:8 row_mask:0xf bank_mask:0xf")
            a(f"v_mov_b32 v34, s{sT}\nv_mov_b32 v35, s{sT + 1}")
            a("v_and_b32 v8, 7, v1\nv_lshrrev_b32 v9, 4, v1\nv_lshl_add_u32 v8, v8, 2, v9\nv_lshlrev_b32 v8, 4, v8")
            a(f"s_mul_i32 s{sA}, s{sP}, 3072\ns_lshl_b32 s{sB}, s{sW}, 9\ns_add_u32 s{sA}, s{sA}, s{sB}\ns_add_u32 s{sE}, s{sA}, {MODP - 1024}")
            a("s_mov_b32 exec_lo, 0x00ff00ff\ns_mov_b32 exec_hi, 0x00ff00ff")
            self.local_stores([f"buffer_store_dwordx4 v[32:35], v8, {srd(rWS)}, s{sE} offen"])
            a(f"s_mov_b64 exec, -1\n{lm2}:")
            la = a.label("na")
            a(f"s_cmp_ge_u32 s{sW}, 4\ns_cbranch_scc1 {la}")
            a(f"v_bfe_u32 v8, v1, 1, 3\nv_lshrrev_b32 v9, 4, v1\nv_lshl_add_u32 v8, v9, 2, v8\nv_lshlrev_b32 v8, 2, v8")
            a(f"v_and_b32 v9, 1, v1\nv_xor_b32 v9, 1, v9\nv_mul_u32_u24 v9, {KO - KE}, v9\nv_add_u32 v8, v8, v9")
            a(f"s_lshr_b32 s{sA}, s{sW}, 1\ns_mul_i32 s{sA}, s{sA}, {KCH}\ns_and_b32 s{sB}, s{sW}, 1\ns_lshl_b32 s{sB}, s{sB}, 8")
            a(f"s_add_u32 s{sA}, s{sA}, s{sB}\ns_add_u32 s{sA}, s{sA}, {L_PART + KE - 28}\nv_add_u32 v8, s{sA}, v8")
            for a2 in range(4):
                for aa in range(2):
                    for rho in range(4):
                        d = 128 + (rho * 8 + a2 * 2 + aa) * 4
                        o = aa * 128 + rho * 16
                        a(f"ds_read2_b32 {vr(d, 2)}, v8 offset0:{o} offset1:{o + 1}")
                        a(f"ds_read2_b32 {vr(d + 2, 2)}, v8 offset0:{o + 2} offset1:{o + 3}")
                if a2 < 3:
                    a("v_add_u32 v8, 1024, v8")
            a(f"{la}:")
            self.unpack8(32, 2)
            self.ln_stats(32, 6, 7, 40)

        self.publish_and_wait(FL1, between)
        self.stamp()
        a(f"s_lshl_b32 s{sA}, s{sP}, 13\ns_add_u32 s{sA}, s{sA}, {R1}\nv_lshlrev_b32 v8, 4, v0")
        a(f"buffer_load_dwordx4 v[16:19], v8, {srd(rWS)}, s{sA} offen sc1")
        a(f"v_lshrrev_b32 v9, 8, v0\nv_lshl_add_u32 v8, v9, 9, v8\nv_add_u32 v8, {L_KVR}, v8")
        a("s_waitcnt vmcnt(0)\nds_write_b128 v8, v[16:19]\ns_waitcnt lgkmcnt(0)\ns_barrier")
        self.stamp()

    def conv(self):
        a = self.a
        lh, lj = a.label("help"), a.label("cj")
        a(f"s_cmp_ge_u32 s{sW}, 4\ns_cbranch_scc1 {lh}")
        a("v_and_b32 v9, 15, v1\nv_lshrrev_b32 v10, 4, v1\nv_lshlrev_b32 v8, 4, v10\nv_lshlrev_b32 v11, 5, v9\nv_sub_u32 v8, v8, v11")
        a(f"s_lshr_b32 s{sA}, s{sW}, 1\ns_mul_i32 s{sA}, s{sA}, 4608\ns_and_b32 s{sB}, s{sW}, 1\ns_lshl_b32 s{sB}, s{sB}, 8")
        a(f"s_add_u32 s{sA}, s{sA}, s{sB}\ns_add_u32 s{sA}, s{sA}, {L_KVR + 480}\nv_add_u32 v8, s{sA}, v8")

        def rd(rho, b):
            return f"ds_read_b128 {vr(32 + (rho & 1) * 32 + b * 4, 4)}, v8 offset:{512 * (7 - b) + 64 * rho}"

        for b in range(8):
            a(rd(0, b))
        a(f"v_lshl_add_u32 v11, v10, 2, v9\nv_and_b32 v11, 15, v11\nv_lshl_add_u32 v11, v10, 4, v11\nv_lshlrev_b32 v11, 4, v11")
        a(f"s_lshl_b32 s{sA}, s{sW}, 13\ns_add_u32 s{sA}, s{sA}, {L_PART}\nv_add_u32 v11, s{sA}, v11")
        for rho in range(4):
            def mf(aa, b):
                t = aa + b
                c = "0" if (rho == 0 and b == 0) else vr(96 + 4 * t, 4)
                return f"v_mfma_f32_16x16x32_bf16 {vr(96 + 4 * t, 4)}, {vr(128 + (rho * 8 + aa) * 4, 4)}, {vr(32 + (rho & 1) * 32 + b * 4, 4)}, {c}"
            if rho < 3:
                n = 0
                for b in range(8):
                    if rho == 0:
                        a(f"s_waitcnt lgkmcnt({min(15, 7 - b + min(n, 8))})")
                    elif b == 0:
                        a("s_waitcnt lgkmcnt(0)")
                    for aa in range(8 - b):
                        a(mf(aa, b))
                        if aa % 2 == 1 and n < 8:
                            a(rd(rho + 1, n))
                            n += 1
                assert n == 8
            else:
                a("s_waitcnt lgkmcnt(0)")
                order = [7, 6, 5, 4, 3, 2, 1, 0]
                for idx, t in enumerate(order):
                    for b in range(t + 1):
                        a(mf(t - b, b))
                    if idx >= 2:
                        tp = order[idx - 2]
                        a(f"ds_write_b128 v11, {vr(96 + 4 * tp, 4)} offset:{1024 * tp}")
                for tp in order[-2:]:
                    a(f"ds_write_b128 v11, {vr(96 + 4 * tp, 4)} offset:{1024 * tp}")
        a(f"s_branch {lj}\n{lh}:")
        self.mk_srd(rG, sWG, 512 * 3584)
        l4 = a.label("n4")
        a(f"s_cmp_lg_u32 s{sW}, 4\ns_cbranch_scc1 {l4}")
        a(f"v_and_b32 v8, 31, v1\nv_mul_u32_u24 v8, 3072, v8\nv_lshrrev_b32 v9, 5, v1\nv_mul_u32_u24 v10, 1536, v9\nv_add_u32 v8, v8, v10")
        a(f"s_mul_i32 s{sA}, s{sXG}, {32 * 3072}\ns_lshl_b32 s{sB}, s{sJ}, 4\ns_add_u32 s{sA}, s{sA}, s{sB}\ns_add_u32 s{sE}, s{sA}, {MODP}")
        self.tagged_loads([(f"buffer_load_dwordx4 {vr(32 + 4 * i, 4)}, v8, {srd(rWS)}, s{sE} offen offset:{512 * i} sc1", vr(34 + 4 * i, 2), True) for i in range(3)])
        regs = [32, 33, 36, 37, 40, 41]
        for sh in (8, 4, 2, 1):
            for r in regs:
                a(f"v_add_f32_dpp v{r}, v{r}, v{r} row_ror:{sh} row_mask:0xf bank_mask:0xf")
        for i, r in enumerate(regs):
            a(f"v_mov_b32 v{44 + i}, v{r}")
        for i, r in enumerate(regs):
            a(f"v_permlane16_swap_b32 v{r}, v{44 + i}")
        for i, r in enumerate(regs):
            a(f"v_add_f32 v{r}, v{r}, v{44 + i}")
        a(f"v_cvt_pk_bf16_f32 v32, v32, v33\nv_cvt_pk_bf16_f32 v33, v36, v37\nv_cvt_pk_bf16_f32 v34, v40, v41\nv_mov_b32 v35, s{sT}")
        a(f"v_lshlrev_b32 v8, 4, v9\ns_lshl_b32 s{sA}, s{sP}, 5\ns_add_u32 s{sA}, s{sA}, {MODF}")
        a(f"s_mov_b32 exec_lo, 1\ns_mov_b32 exec_hi, 1\nbuffer_store_dwordx4 v[32:35], v8, {srd(rWS)}, s{sA} offen sc1\ns_mov_b64 exec, -1\n{l4}:")
        self.w1_offsets(16)
        a(f"s_sub_u32 s{sE}, s{sW}, 4\ns_add_u32 s{sE}, s{sE}, s{sXG}\ns_and_b32 s{sE}, s{sE}, 7")
        self.w1_dma(16, sE, rG, L_G)
        a(f"s_add_u32 s{sE}, s{sE}, 4\ns_and_b32 s{sE}, s{sE}, 7")
        self.w1_dma(16, sE, rG, L_G)
        a(f"{lj}:")
        a("v_lshrrev_b32 v8, 3, v1\nv_bfe_u32 v9, v1, 1, 2\nv_lshl_add_u32 v8, v9, 2, v8\nv_and_b32 v8, 15, v8\nv_lshl_add_u32 v8, v9, 4, v8")
        a(f"v_and_b32 v9, 1, v1\nv_lshl_add_u32 v8, v8, 1, v9\nv_lshlrev_b32 v8, 3, v8\ns_lshl_b32 s{sA}, s{sW}, 10\ns_add_u32 s{sA}, s{sA}, {L_PART}")
        a(f"v_add_u32 v8, s{sA}, v8\nv_xor_b32 v9, 128, v8")
        a(f"s_lshl_b32 s{sA}, s{sW}, 9\ns_sub_u32 s{sA}, {L_KVR + 4092 - 256}, s{sA}\nv_lshlrev_b32 v10, 2, v1\nv_sub_u32 v10, s{sA}, v10")
        a("s_waitcnt lgkmcnt(0)\ns_barrier")
        self.stamp()
        for h, ad in ((0, 8), (1, 9)):
            for mw in range(4):
                a(f"ds_read_b64 {vr(32 + h * 8 + mw * 2, 2)}, v{ad} offset:{8192 * mw}")
            for ch in range(2):
                a(f"ds_read_b32 v{48 + h * 2 + ch}, v10 offset:{4608 * ch + 256 * (1 - h)}")
        a(f"v_mov_b32 v62, s{sT}\nv_mov_b32 v63, s{sT + 1}\nv_mov_b32 v66, s{sT}\nv_mov_b32 v67, s{sT + 1}")
        a(f"s_mul_i32 s{sA}, s{sW}, {ZG}\ns_lshl_b32 s{sB}, s{sP}, 11\ns_add_u32 s{sA}, s{sA}, s{sB}\ns_add_u32 s{sE}, s{sA}, {Z}\nv_lshlrev_b32 v11, 4, v1")
        for h in range(2):
            a(f"s_waitcnt lgkmcnt({6 * (1 - h)})")
            for ch in range(2):
                p = 32 + h * 8 + ch * 4
                kv = 48 + h * 2 + ch
                a(f"v_pk_add_f32 {vr(p, 2)}, {vr(p, 2)}, {vr(p + 2, 2)}")
                a(f"v_and_b32 v52, 0xffff0000, v{kv}\nv_lshlrev_b32 v53, 16, v{kv}")
                a(f"v_fmac_f32 v{p}, s{sDA + ch}, v52\nv_fmac_f32 v{p + 1}, s{sDA + ch}, v53")
            p = 32 + h * 8
            a(f"v_cvt_pk_bf16_f32 v{60 + 4 * h}, v{p}, v{p + 4}\nv_cvt_pk_bf16_f32 v{61 + 4 * h}, v{p + 1}, v{p + 5}")
            a(f"buffer_store_dwordx4 {vr(60 + 4 * h, 4)}, v11, {srd(rWS)}, s{sE} offen offset:{1024 * h} sc1")
        self.stamp()
        self.mk_srd(rU, sWU, 512 * 3584)
        self.w1_offsets(16)
        a(f"s_add_u32 s{sE}, s{sW}, s{sXG}\ns_and_b32 s{sE}, s{sE}, 7")
        self.w1_dma(16, sE, rU, L_U)
        a("s_barrier")

    def p2(self):
        a = self.a
        a(f"s_mov_b32 s{sE}, {MODF}\nv_lshlrev_b32 v8, 4, v0")
        self.tagged_loads([(f"buffer_load_dwordx4 v[16:19], v8, {srd(rWS)}, s{sE} offen sc1", "v19", False)])
        a(f"v_and_b32 v9, 1, v0\nv_mul_u32_u24 v9, 3072, v9\nv_lshrrev_b32 v8, 1, v0\nv_lshl_add_u32 v8, v8, 2, v9\nv_add_u32 v8, {L_MOD}, v8")
        for i in range(3):
            a(f"ds_write_b32 v8, v{16 + i} offset:{1024 * i}")
        self.stamp()
        a(f"v_lshrrev_b32 v8, 2, v0\nv_and_b32 v9, 3, v0\nv_lshlrev_b32 v10, 11, v8\nv_lshl_add_u32 v10, v9, 4, v10")
        a(f"s_mul_i32 s{sA}, s{sXG}, {ZG}\ns_lshl_b32 s{sB}, s{sJ}, 6\ns_add_u32 s{sA}, s{sA}, s{sB}\ns_add_u32 s{sE}, s{sA}, {Z}\ns_add_u32 s{sF}, s{sE}, {128 * 2048}")
        a(f"v_mul_u32_u24 v9, 2080, v9\nv_lshl_add_u32 v8, v8, 2, v9\nv_add_u32 v8, {L_PART}, v8")
        self.tagged_loads([(f"buffer_load_dwordx4 v[20:23], v10, {srd(rWS)}, s{sE} offen sc1", "v[22:23]", True),
                           (f"buffer_load_dwordx4 v[24:27], v10, {srd(rWS)}, s{sF} offen sc1", "v[26:27]", True)])
        a("ds_write_b32 v8, v20\nds_write_b32 v8, v21 offset:1040\nds_write_b32 v8, v24 offset:512\nds_write_b32 v8, v25 offset:1552")
        self.stamp()
        a(f"v_lshlrev_b32 v9, 4, v1\ns_mul_i32 s{sA}, s{sW}, 1040\ns_add_u32 s{sA}, s{sA}, {L_PART}\nv_add_u32 v10, s{sA}, v9\nv_add_u32 v9, {L_MOD}, v9")
        a("s_waitcnt lgkmcnt(0)\ns_barrier")
        self.bump_epoch()
        a(f"v_lshlrev_b32 v9, 4, v1\nv_add_u32 v9, {L_MOD}, v9")
        for i in range(5):
            a(f"ds_read_b128 {vr(16 + 4 * i, 4)}, v9 offset:{1024 * i}")
        a("ds_read_b128 v[36:39], v10")
        X, N, T1, T2 = 40, 48, 56, 64
        self.unpack8(X, 2)
        for i in range(0, 8, 2):
            a(f"v_pk_add_f32 {vr(N + i, 2)}, {vr(X + i, 2)}, v[6:7] op_sel_hi:[1,0] neg_lo:[0,1] neg_hi:[0,1]")
        for i in range(0, 8, 2):
            a(f"v_pk_mul_f32 {vr(N + i, 2)}, {vr(N + i, 2)}, v[6:7] op_sel:[0,1] op_sel_hi:[1,1]")
        a("s_waitcnt lgkmcnt(4)")
        self.unpack8(T1, 16)
        self.unpack8(T2, 20)
        for i in range(0, 8, 2):
            a(f"v_pk_add_f32 {vr(T1 + i, 2)}, {vr(T1 + i, 2)}, {vr(N + i, 2)}")
        for i in range(0, 8, 2):
            a(f"v_pk_fma_f32 {vr(N + i, 2)}, {vr(N + i, 2)}, {vr(T2 + i, 2)}, {vr(T1 + i, 2)}")
        a("s_waitcnt lgkmcnt(0)")
        self.unpack8(T1, 24)
        self.unpack8(T2, 36)
        for i in range(0, 8, 2):
            a(f"v_pk_mul_f32 {vr(N + i, 2)}, {vr(N + i, 2)}, {vr(T1 + i, 2)}")
        for i in range(0, 8, 2):
            a(f"v_pk_fma_f32 {vr(X + i, 2)}, {vr(N + i, 2)}, {vr(T2 + i, 2)}, {vr(X + i, 2)}")
        self.ln_stats(X, 6, 7, 72)
        for i in range(4):
            a(f"v_cvt_pk_bf16_f32 v{2 + i}, v{X + 2 * i}, v{X + 2 * i + 1}")
        self.unpack8(T1, 28)
        self.unpack8(T2, 32)
        for i in range(0, 8, 2):
            a(f"v_pk_add_f32 {vr(N + i, 2)}, {vr(X + i, 2)}, v[6:7] op_sel_hi:[1,0] neg_lo:[0,1] neg_hi:[0,1]")
        for i in range(0, 8, 2):
            a(f"v_pk_mul_f32 {vr(N + i, 2)}, {vr(N + i, 2)}, v[6:7] op_sel:[0,1] op_sel_hi:[1,1]")
        for i in range(0, 8, 2):
            a(f"v_pk_add_f32 {vr(T1 + i, 2)}, {vr(T1 + i, 2)}, {vr(N + i, 2)}")
        for i in range(0, 8, 2):
            a(f"v_pk_fma_f32 {vr(N + i, 2)}, {vr(N + i, 2)}, {vr(T2 + i, 2)}, {vr(T1 + i, 2)}")
        for d, (p, q) in enumerate(((0, 2), (4, 6), (1, 3), (5, 7))):
            a(f"v_cvt_pk_bf16_f32 v{16 + d}, v{N + p}, v{N + q}")
        a("v_lshrrev_b32 v8, 1, v1\nv_and_b32 v9, 1, v1\nv_lshlrev_b32 v8, 8, v8\nv_lshl_add_u32 v8, v9, 4, v8")
        a(f"s_lshl_b32 s{sA}, s{sP}, 13\ns_lshl_b32 s{sB}, s{sW}, 5\ns_add_u32 s{sA}, s{sA}, s{sB}\ns_add_u32 s{sE}, s{sA}, {R1}")
        self.local_stores([f"buffer_store_dwordx4 v[16:19], v8, {srd(rWS)}, s{sE} offen",
                           f"global_store_dwordx4 v15, v[2:5], {sp(sOUT)}"])
        self.stamp()
        self.publish_and_wait(FL3)
        self.stamp()

    def gemm1(self):
        a = self.a
        ACC, HB, WF, DEPTH = 88, 48, 16, 5
        a("v_bfe_u32 v8, v1, 3, 1\nv_lshlrev_b32 v8, 13, v8\nv_and_b32 v9, 7, v1\nv_lshl_add_u32 v8, v9, 5, v8")
        a("v_lshrrev_b32 v9, 5, v1\nv_lshl_add_u32 v8, v9, 8, v8\nv_bfe_u32 v9, v1, 4, 1\nv_lshl_add_u32 v8, v9, 4, v8")
        a(f"s_lshl_b32 s{sA}, s{sXG}, 3\ns_add_u32 s{sA}, s{sA}, s{sW}\ns_lshl_b32 s{sA}, s{sA}, 15\ns_add_u32 s{sA}, s{sA}, {R1}")
        a(f"s_add_u32 s{sB}, s{sA}, 4096\ns_add_u32 s{sE}, s{sA}, 16384\ns_add_u32 s{sF}, s{sA}, 20480")
        so = {(0, 0): sA, (0, 1): sB, (1, 0): sE, (1, 1): sF}

        def hl(kk, rt):
            return f"buffer_load_dwordx4 {vr(HB + (kk % DEPTH) * 8 + rt * 4, 4)}, v8, {srd(rWS)}, s{so[(rt, kk >> 3)]} offen offset:{512 * (kk & 7)} sc1"

        for kk in range(DEPTH):
            for rt in range(2):
                a(hl(kk, rt))
        a(f"s_mul_i32 s{sGt}, s{sXG}, {ZG}\ns_mul_i32 s{sCn}, s{sJ}, 12288\ns_add_u32 s{sGt}, s{sGt}, s{sCn}\ns_add_u32 s{sGt}, s{sGt}, {Z + 0x80000}")
        a(f"v_min_u32 v9, 383, v0\nv_lshlrev_b32 v9, 5, v9\nbuffer_load_dword v44, v9, {srd(rWS)}, s{sGt} offen sc1")
        a("v_lshrrev_b32 v9, 2, v1\nv_mul_u32_u24 v9, 224, v9\nv_and_b32 v10, 3, v1\nv_lshl_add_u32 v11, v10, 3, v9")
        a(f"v_add_u32 v12, {L_U}, v11\nv_lshrrev_b32 v10, 1, v10\nv_mul_u32_u24 v10, {L_U - 16}, v10\nv_add3_u32 v13, v11, v10, 0\nv_add_u32 v13, 96, v13")
        tiles = [(11, 0), (12, 0), (11, 32), (12, 32), (11, 64), (12, 64), (13, 0)]

        def wr(n):
            kk, t = divmod(n, 7)
            ad, off = tiles[t]
            return [f"ds_read_b64_tr_b16 {vr(WF + t * 4 + 2 * u, 2)}, v{ad} offset:{kk * 3584 + u * 112 + off}" for u in range(2)]

        AHEAD = 4
        for n in range(AHEAD):
            for x in wr(n):
                a(x)
        for kk in range(16):
            issued = min(16, kk + DEPTH)
            extra = 1 if kk < DEPTH else 0
            a(f"s_waitcnt vmcnt({2 * (issued - kk - 1) + extra})")
            for t in range(7):
                n = kk * 7 + t
                left = min(112, n + AHEAD) - n - 1
                a(f"s_waitcnt lgkmcnt({2 * left})")
                for rt in range(2):
                    acc = vr(ACC + (rt * 7 + t) * 4, 4)
                    c = "0" if kk == 0 else acc
                    a(f"v_mfma_f32_16x16x32_bf16 {acc}, {vr(WF + t * 4, 4)}, {vr(HB + (kk % DEPTH) * 8 + rt * 4, 4)}, {c}")
                    if n + AHEAD < 112:
                        a(wr(n + AHEAD)[rt])
            if kk + DEPTH < 16:
                for rt in range(2):
                    a(hl(kk + DEPTH, rt))
        self.stamp()
        a("s_barrier")
        self.wd_setup()
        self.wd_dma(0)
        C1 = -1.5957691216057308 * 1.4426950408889634
        import struct
        f2h = lambda x: "0x%08x" % struct.unpack("<I", struct.pack("<f", x))[0]
        a(f"v_mov_b32 v44, {f2h(C1 * 0.044715)}\nv_mov_b32 v45, {f2h(C1)}")
        a(f"s_lshr_b32 s{sA}, s{sJ}, 2\ns_lshl_b32 s{sA}, s{sA}, 3\ns_add_u32 s{sA}, s{sA}, s{sW}\ns_mul_i32 s{sA}, s{sA}, 14336")
        a(f"s_mul_i32 s{sB}, s{sXG}, {ZG}\ns_add_u32 s{sA}, s{sA}, s{sB}\ns_add_u32 s{sE}, s{sA}, {Z}\ns_add_u32 s{sF}, s{sE}, 7168")
        a(f"s_and_b32 s{sA}, s{sJ}, 3\ns_lshl_b32 s{sB}, s{sA}, 10\nv_lshlrev_b32 v9, 4, v1\nv_add_u32 v46, s{sB}, v9")
        a(f"s_lshr_b32 s{sB}, s{sA}, 1\ns_lshl_b32 s{sB}, s{sB}, 10\ns_and_b32 s{sCn}, s{sA}, 1\ns_lshl_b32 s{sCn}, s{sCn}, 3\ns_add_u32 s{sB}, s{sB}, s{sCn}\ns_add_u32 s{sB}, s{sB}, 4096")
        a(f"v_add_u32 v47, s{sB}, v9\ns_lshl_b32 s{sB}, s{sA}, 2\ns_add_u32 s{sB}, s{sB}, 6144\nv_add_u32 v14, s{sB}, v9")
        for rt in range(2):
            base = ACC + rt * 28
            mx = base + 24
            a(f"v_permlane32_swap_b32 v{mx}, v{mx + 2}\nv_permlane32_swap_b32 v{mx + 1}, v{mx + 3}")
            pairs = []
            for tt in range(3):
                for h in range(2):
                    pairs.append((base + 8 * tt + 2 * h, base + 8 * tt + 4 + 2 * h))
            pairs.append((mx, mx + 2))
            T, O = 48, 64 + 8 * rt
            for d, (g, u) in enumerate(pairs):
                a(f"v_pk_mul_f32 {vr(T + 2 * d, 2)}, {vr(g, 2)}, {vr(g, 2)}")
            for d, (g, u) in enumerate(pairs):
                a(f"v_pk_fma_f32 {vr(T + 2 * d, 2)}, {vr(T + 2 * d, 2)}, v[44:45], v[44:45] op_sel:[0,0,1] op_sel_hi:[1,0,1]")
            for d, (g, u) in enumerate(pairs):
                a(f"v_pk_mul_f32 {vr(T + 2 * d, 2)}, {vr(T + 2 * d, 2)}, {vr(g, 2)}")
            for d, (g, u) in enumerate(pairs):
                a(f"v_exp_f32 v{T + 2 * d}, v{T + 2 * d}\nv_exp_f32 v{T + 2 * d + 1}, v{T + 2 * d + 1}")
                a(f"v_pk_mul_f32 {vr(u, 2)}, {vr(u, 2)}, {vr(g, 2)}")
            for d, (g, u) in enumerate(pairs):
                a(f"v_pk_add_f32 {vr(T + 2 * d, 2)}, {vr(T + 2 * d, 2)}, 1.0 op_sel_hi:[1,0]")
            for d, (g, u) in enumerate(pairs):
                a(f"v_rcp_f32 v{T + 2 * d}, v{T + 2 * d}\nv_rcp_f32 v{T + 2 * d + 1}, v{T + 2 * d + 1}")
            for d, (g, u) in enumerate(pairs):
                a(f"v_pk_mul_f32 {vr(u, 2)}, {vr(u, 2)}, {vr(T + 2 * d, 2)}")
            for d, (g, u) in enumerate(pairs):
                a(f"v_cvt_pk_bf16_f32 v{O + d}, v{u}, v{u + 1}")
            if rt == 0:
                a("s_waitcnt vmcnt(0)")
                self.wd_read(0)
                a("s_waitcnt lgkmcnt(0)")
                self.wd_dma(1)
        st = []
        for rt, so_ in ((0, sE), (1, sF)):
            O = 64 + 8 * rt
            st += [f"buffer_store_dwordx4 {vr(O, 4)}, v46, {srd(rWS)}, s{so_} offen",
                   f"buffer_store_dwordx2 {vr(O + 4, 2)}, v47, {srd(rWS)}, s{so_} offen",
                   f"buffer_store_dword v{O + 6}, v14, {srd(rWS)}, s{so_} offen"]
        self.local_stores(st)
        self.stamp()
        self.publish_and_wait(FL4, lambda: self.wd_read(1))
        self.stamp()

    WD = 144

    def wd_setup(self):
        a = self.a
        self.mk_srd(rD, sWD, 1792 * 1024)
        a("v_lshrrev_b32 v9, 3, v1\nv_lshrrev_b32 v10, 4, v1\nv_lshlrev_b32 v10, 1, v10\nv_and_b32 v11, 7, v1\nv_xor_b32 v10, v10, v11")
        a("v_lshlrev_b32 v9, 10, v9\nv_lshl_add_u32 v16, v10, 4, v9")
        a(f"s_mul_i32 s{sA}, s{sW}, 14336\nv_lshrrev_b32 v9, 2, v1\nv_bfe_u32 v10, v1, 3, 2\nv_and_b32 v11, 3, v1")
        a(f"v_lshlrev_b32 v9, 7, v9\nv_lshl_add_u32 v9, v10, 5, v9\nv_lshl_add_u32 v9, v11, 3, v9\nv_add_u32 v17, s{sA}, v9")
        a("v_bfe_u32 v9, v1, 3, 1\nv_mul_u32_u24 v9, 56, v9\nv_bfe_u32 v10, v1, 2, 1\nv_add3_u32 v9, v9, v10, 48")
        a("v_bfe_u32 v10, v1, 4, 1\nv_lshlrev_b32 v10, 1, v10\nv_lshrrev_b32 v12, 5, v1\nv_add_u32 v10, v10, v12\nv_lshl_add_u32 v9, v10, 1, v9")
        a(f"v_lshlrev_b32 v9, 7, v9\nv_lshl_add_u32 v9, v10, 5, v9\nv_lshl_add_u32 v9, v11, 3, v9\nv_add_u32 v21, s{sA}, v9")
        for nt in range(1, 4):
            a(f"v_xor_b32 v{17 + nt}, {32 * nt}, v17\nv_xor_b32 v{21 + nt}, {32 * nt}, v21")

    def wd_dma(self, p):
        a = self.a
        a(f"s_mul_i32 s{sA}, s{sW}, {224 * 1024}\ns_and_b32 s{sB}, s{sJ}, 7\ns_lshl_b32 s{sB}, s{sB}, 7\ns_add_u32 s{sA}, s{sA}, s{sB}")
        a(f"s_add_u32 s{sA}, s{sA}, {112 * 1024 * p}\ns_mul_i32 s{sB}, s{sW}, 14336")
        for i in range(14):
            a(f"s_add_u32 m0, s{sB}, {1024 * i}")
            a(f"buffer_load_dwordx4 v16, {srd(rD)}, s{sA} offen lds")
            if i < 13:
                a(f"s_add_u32 s{sA}, s{sA}, 8192")

    def wd_read(self, p):
        a = self.a
        for nt in range(4):
            def dst(f, u):
                return vr(self.WD + (f * 4 + nt) * 4 + 2 * u, 2)
            for q in range(2):
                for u in range(2):
                    a(f"ds_read_b64_tr_b16 {dst(2 * p + q, u)}, v{17 + nt} offset:{(56 * q + 16 * u) * 128}")
                a(f"ds_read_b64_tr_b16 {dst(4 + p, q)}, v{17 + nt} offset:{(56 * q + 32) * 128}")
            a(f"ds_read_b64_tr_b16 {dst(6, p)}, v{21 + nt}")

    def gemm2(self):
        a = self.a
        HB, ACC = 16, 72
        a(f"s_lshr_b32 s{sB}, s{sJ}, 3\ns_lshl_b32 s{sA}, s{sW}, 3\ns_add_u32 s{sA}, s{sA}, s{sB}\ns_mul_i32 s{sA}, s{sA}, 14336")
        a(f"s_mul_i32 s{sE}, s{sXG}, {ZG}\ns_add_u32 s{sA}, s{sA}, s{sE}\ns_add_u32 s{sA}, s{sA}, {Z}")
        a(f"v_lshlrev_b32 v8, 4, v1\nv_add_u32 v9, 4096, v8")

        def loads(i):
            off = (i >> 1) * 4 * 14336 + (i & 1) * 7168
            r = [f"s_add_u32 s{sE}, s{sA}, {off}"]
            for f in range(7):
                r.append(f"buffer_load_dwordx4 {vr(HB + (i & 1) * 28 + f * 4, 4)}, v{8 + (f >> 2)}, {srd(rWS)}, s{sE} offen offset:{1024 * (f & 3)} sc1")
            return r

        for i in range(2):
            for x in loads(i):
                a(x)
        a(f"s_lshr_b32 s{sF}, s{sW}, 2\ns_lshl_b32 s{sF}, s{sF}, 2\ns_add_u32 s{sF}, s{sF}, s{sB}\ns_lshl_b32 s{sF}, s{sF}, 2")
        a(f"s_and_b32 s{sCn}, s{sW}, 3\ns_add_u32 s{sF}, s{sF}, s{sCn}\ns_lshl_b32 s{sCn}, s{sXG}, 5\ns_add_u32 s{sF}, s{sF}, s{sCn}\ns_lshl_b32 s{sF}, s{sF}, 13")
        a(f"s_and_b32 s{sCn}, s{sJ}, 7\ns_lshl_b32 s{sCn}, s{sCn}, 7\ns_add_u32 s{sF}, s{sF}, s{sCn}")
        a(f"v_lshrrev_b32 v10, 3, v1\nv_and_b32 v11, 7, v1\nv_lshlrev_b32 v15, 10, v10\nv_lshl_add_u32 v15, v11, 4, v15\nv_add_u32 v15, s{sF}, v15")
        a(f"s_add_u32 s{sCn}, s{sCn}, {L_MOD + 5 * 1024}\nv_lshl_add_u32 v12, v11, 4, s{sCn}\nds_read_b128 v[136:139], v12")
        a("v_lshrrev_b32 v12, 5, v1\nv_lshl_add_u32 v12, v12, 2, v1\nv_and_b32 v12, 15, v12\nv_and_b32 v13, 48, v1\nv_or_b32 v12, v12, v13")
        a(f"s_lshl_b32 s{sF}, s{sW}, 14\nv_lshl_add_u32 v12, v12, 4, s{sF}\nv_xor_b32 v13, 128, v12")
        for i in range(4):
            nxt = loads(i + 2) if i < 2 else None
            if nxt:
                a(nxt[0])
            for f in range(7):
                if i < 2:
                    out = 13
                elif i == 2:
                    out = 14 - f
                else:
                    out = 7 - f
                a(f"s_waitcnt vmcnt({out})")
                for nt in range(4):
                    acc = vr(ACC + (i * 4 + nt) * 4, 4)
                    c = "0" if f == 0 else acc
                    a(f"v_mfma_f32_16x16x32_bf16 {acc}, {vr(self.WD + (f * 4 + nt) * 4, 4)}, {vr(HB + (i & 1) * 28 + f * 4, 4)}, {c}")
                if nxt:
                    a(nxt[1 + f])
                if i >= 1 and 2 <= f < 6:
                    nt = f - 2
                    a(f"ds_write_b128 v{12 + (nt & 1)}, {vr(ACC + ((i - 1) * 4 + nt) * 4, 4)} offset:{((i - 1) * 4 + nt) * 1024}")
            if i == 1:
                a(f"global_load_dwordx4 v[2:5], v15, {sp(sOUT)} sc1")
        a(f"s_and_b32 s{sA}, s{sW}, 1\ns_lshl_b32 s{sA}, s{sA}, 3\nv_and_b32 v16, 3, v1\nv_lshl_add_u32 v16, v16, 2, v10\nv_add_u32 v16, s{sA}, v16\nv_and_b32 v16, 15, v16")
        a(f"v_lshl_add_u32 v16, v11, 5, v16\ns_lshr_b32 s{sA}, s{sW}, 1\ns_lshl_b32 s{sA}, s{sA}, 12\nv_lshl_add_u32 v16, v16, 4, s{sA}\nv_add_u32 v17, 65536, v16")
        for nt in range(4):
            a(f"ds_write_b128 v{12 + (nt & 1)}, {vr(ACC + (12 + nt) * 4, 4)} offset:{(12 + nt) * 1024}")
        self.stamp()
        a("s_waitcnt lgkmcnt(0)\ns_barrier")
        for v in range(8):
            for h in range(2):
                a(f"ds_read_b128 {vr(20 + v * 8 + 4 * h, 4)}, v{16 + (v >> 2)} offset:{(v & 3) * 16384 + 256 * h}")
        self.unpack8(92, 136)
        a("s_waitcnt vmcnt(0)")
        self.unpack8(100, 2)
        for v in range(1, 8):
            a(f"s_waitcnt lgkmcnt({2 * (7 - v)})")
            for i in range(0, 8, 2):
                a(f"v_pk_add_f32 {vr(20 + i, 2)}, {vr(20 + i, 2)}, {vr(20 + v * 8 + i, 2)}")
        for i in range(0, 8, 2):
            a(f"v_pk_fma_f32 {vr(20 + i, 2)}, {vr(20 + i, 2)}, {vr(92 + i, 2)}, {vr(100 + i, 2)}")
        for i in range(4):
            a(f"v_cvt_pk_bf16_f32 v{2 + i}, v{20 + 2 * i}, v{21 + 2 * i}")
        a(f"global_store_dwordx4 v15, v[2:5], {sp(sOUT)}")
        if self.stamps:
            a("s_waitcnt vmcnt(0)")
        self.stamp()

    def build(self):
        a = self.a
        done = False
        for name, fn in (("p0", self.phase0), ("conv", self.conv), ("p2", self.p2), ("g1", self.gemm1), ("g2", self.gemm2)):
            fn()
            if self.maybe_stop(name):
                done = True
                break
        if not done:
            self.end()
        a("L_exit:\nL_last:\ns_endpgm")
        ref = open(f"cdna_kernels/{NAME}.s.ref").read().split("\n")
        head = [ln for ln in ref if ln.startswith(";") and "@launch" not in ln and "Override" not in ln and "grid=ceil" not in ln]
        txt = "\n".join(head) + f"\n; @launch grid=(256,1,1) block=(512,1,1) lds={LDS_BYTES}\n"
        txt += f'.amdgcn_target "amdgcn-amd-amdhsa--gfx950"\n.text\n.globl {NAME}_kernel\n.p2align 8\n.type {NAME}_kernel,@function\n{NAME}_kernel:\n'
        txt += a.finish()
        txt += f""".section .rodata,"a"
.p2align 6
.amdhsa_kernel {NAME}_kernel
  .amdhsa_next_free_vgpr 256
  .amdhsa_next_free_sgpr 102
  .amdhsa_accum_offset 256
  .amdhsa_group_segment_fixed_size 0
  .amdhsa_kernarg_size 120
  .amdhsa_user_sgpr_count 2
  .amdhsa_user_sgpr_kernarg_segment_ptr 1
  .amdhsa_system_sgpr_workgroup_id_x 1
  .amdhsa_float_denorm_mode_32 3
.end_amdhsa_kernel
"""
        return txt


if __name__ == "__main__":
    import argparse
    ap = argparse.ArgumentParser()
    ap.add_argument("out")
    ap.add_argument("--stop")
    ap.add_argument("--stamps", action="store_true")
    ap.add_argument("--slow", action="store_true")
    o = ap.parse_args()
    open(o.out, "w").write(Gen(o.stop, o.stamps, o.slow).build())
```

```python
import gen as G
base = G.Gen().build()
mark = "    s_waitcnt lgkmcnt(0)\n"
i = base.index(mark) + len(mark)
def chain(ptr, off):
    b = f"s_lshl_b32 s72, s2, 13\ns_add_u32 s72, s72, {off}\nv_mov_b32 v20, s72\n"
    for k in range(32):
        b += f"global_load_dword v21, v20, s[{ptr}:{ptr+1}]\nv_add_u32 v20, 256, v20\ns_waitcnt vmcnt(0)\n"
    return b
def bulk(ptr, off, n):
    b = f"s_mul_i32 s72, s2, {8192*n}\ns_add_u32 s72, s72, {off}\nv_lshl_add_u32 v20, v0, 4, s72\n"
    for k in range(n):
        b += f"global_load_dwordx4 v[24:27], v20, s[{ptr}:{ptr+1}]\nv_add_u32 v20, 8192, v20\n"
    return b + "s_waitcnt vmcnt(0)\ns_barrier\n"
V = {"a": "", "b": chain(16, 0), "c": chain(32, 32 << 20), "d": chain(32, 250 << 20), "e": bulk(32, 32 << 20, 12), "f": bulk(32, 220 << 20, 12)}
for n, x in V.items():
    open(f"p_{n}.s", "w").write(base[:i] + x + base[i:])
```

```python
import gen as G
N = G.NAME
base = open("h_a.s").read()
a = base.replace("hold_42:\n", "s_waitcnt vmcnt(0)\ns_barrier\ns_sleep 100\nbuffer_wbl2 sc1\ns_waitcnt vmcnt(0)\nhold_42:\n")
open("o_a.s", "w").write(a)
triv = """.text
.globl triv_kernel
.p2align 8
.type triv_kernel,@function
triv_kernel:
s_endpgm
.section .rodata,"a"
.p2align 6
.amdhsa_kernel triv_kernel
  .amdhsa_next_free_vgpr 8
  .amdhsa_next_free_sgpr 16
  .amdhsa_accum_offset 8
  .amdhsa_group_segment_fixed_size 0
  .amdhsa_kernarg_size 120
  .amdhsa_user_sgpr_count 2
  .amdhsa_user_sgpr_kernarg_segment_ptr 1
  .amdhsa_system_sgpr_workgroup_id_x 1
.end_amdhsa_kernel
"""
L = "; @launch grid=(256,1,1) block=(512,1,1) lds=163840\n"
main = f"; @launch kernel={N}_kernel grid=(256,1,1) block=(512,1,1) lds=163840\n"
tr = "; @launch kernel=triv_kernel grid=(256,1,1) block=(64,1,1) lds=0\n"
open("o_b.s", "w").write(base.replace(L, tr + main) + triv)
open("o_c.s", "w").write(base.replace(L, main + tr) + triv)
open("o_d.s", "w").write(base.replace(L, tr + tr + tr + main) + triv)
open("o_e.s", "w").write(base.replace(L, main))
```

```python
import struct
import sys
from asmlib import Asm

NAME = "adaLN_cond__ssm_conv_h3__glu_gated_geglu__prompt"

FL1, FL3, FL4, FL5 = 0x4000, 0x6000, 0x8000, 0xA000
MODF = 0x2000
MODP = 0x10000
R1 = 0x100000
Z = 0x300000
ZG = 0xE0000
STAMP = 0xA00000
WS_BYTES = 0x1000000

L_G = 0
L_U = 65536
L_KT = 0
L_VT = 9 * 1040
L_KVR = 114688
L_PART = 131072
L_MOD = 131072 + 8448
LDS_BYTES = 163840
KCH = 8320
KE, KO = 32, 32 + 4096 + 64
SPIN = 1 << 16
C1 = 1.5957691216057308 * 1.4426950408889634
ALPHA = (C1 * 0.044715) ** (1.0 / 3.0)


def f2h(x):
    return "0x%08x" % struct.unpack("<I", struct.pack("<f", x))[0]


sQ, sK, sV, sSH, sSK, sSD, sWG, sWU, sWD, sC, sWM, sOUT, sDBG, sWS = (
    4, 6, 8, 10, 12, 14, 18, 20, 22, 24, 26, 28, 30, 32)
sXG, sJ, sW, sP, sT, sFAST, sID = 34, 35, 36, 37, 38, 40, 41
sDA, sDB = 42, 43
rK, rV, rG, rU, rD, rWS, rSK = 44, 48, 52, 56, 60, 64, 68
sA, sB, sCn, sE, sF, sGt = 72, 73, 74, 75, 76, 77
sM = 78
sWP, sWO = 100, 101
sKW = 3
sST = 80


def sp(n):
    return f"s[{n}:{n + 1}]"


def srd(n):
    return f"s[{n}:{n + 3}]"


def vr(n, k):
    return f"v[{n}:{n + k - 1}]"


DEFAULTS = dict(nb1=2, nb2=1, nb3=1, sp_lines=16, wk_lines=24, wk_at=8, w_step=2, dma_gap=12, out_sc1=0, depth=4, d0=1, ring=5, r0=3, fin_at=16, spare=('d', 'z', 'y', 'o'))


class Gen:
    def __init__(self, stop=None, stamps=False, force_slow=False, **opt):
        self.o = dict(DEFAULTS)
        self.o.update(opt)
        self.a = Asm()
        self.stop = stop
        self.stamps = stamps
        self.force_slow = force_slow
        self.nst = 0
        self.nb = 0
        self.wd_done = 0

    def stamp(self):
        if not self.stamps:
            return
        a = self.a
        a(f"s_memrealtime {sp(sM)}")
        a("s_waitcnt lgkmcnt(0)")
        a(f"s_mov_b32 s{sST + self.nst}, s{sM}")
        self.nst += 1

    def mk_srd(self, r, p, nbytes):
        self.a(f"s_mov_b64 {sp(r)}, {sp(p)}\ns_mov_b32 s{r + 2}, {nbytes}\ns_mov_b32 s{r + 3}, 0x20000")

    def local_stores(self, lines):
        a = self.a
        ls, le = a.label("slow"), a.label("join")
        a(f"s_cmp_eq_u32 s{sFAST}, 0\ns_cbranch_scc1 {ls}")
        for ln in lines:
            a(ln)
        a(f"s_branch {le}\n{ls}:")
        for ln in lines:
            a(ln + " sc1")
        a(f"{le}:")

    def flag_store(self, fl, sline, sword):
        a = self.a
        a(f"s_lshl_b32 s{sA}, s{sXG}, 3\ns_add_u32 s{sA}, s{sA}, s{sline}\ns_lshl_b32 s{sA}, s{sA}, 5\ns_add_u32 s{sA}, s{sA}, s{sword}")
        a(f"s_lshl_b32 s{sA}, s{sA}, 2\ns_add_u32 s{sA}, s{sA}, {fl}\nv_mov_b32 v8, 0\nv_mov_b32 v9, s{sT}")
        a("s_waitcnt vmcnt(0)\ns_mov_b64 exec, 1")
        self.local_stores([f"buffer_store_dword v9, v8, {srd(rWS)}, s{sA} offen"])
        a("s_mov_b64 exec, -1")

    def flag_poll(self, fl, sline, voff):
        a = self.a
        lp, ld = a.label("poll"), a.label("seen")
        a(f"s_lshl_b32 s{sA}, s{sXG}, 3\ns_add_u32 s{sA}, s{sA}, s{sline}\ns_lshl_b32 s{sA}, s{sA}, 7\ns_add_u32 s{sA}, s{sA}, {fl}")
        a(f"s_mov_b32 s{sCn}, 0\n{lp}:")
        a(f"buffer_load_dword v9, v{voff}, {srd(rWS)}, s{sA} offen sc1\ns_add_u32 s{sCn}, s{sCn}, 1\ns_waitcnt vmcnt(0)")
        a(f"v_cmp_ne_u32 vcc, s{sT}, v9\ns_cbranch_vccz {ld}")
        a(f"s_cmp_lt_u32 s{sCn}, {SPIN}\ns_cbranch_scc1 {lp}\n{ld}:")

    def tagged_loads(self, loads, behind=None):
        a = self.a
        lp, ld, lc = a.label("tag"), a.label("tagok"), a.label("tagchk")
        if behind:
            for ins, _, _ in loads:
                a(ins)
            n = behind()
            a(f"s_mov_b32 s{sCn}, 0\ns_waitcnt vmcnt({n})\ns_branch {lc}")
        else:
            a(f"s_mov_b32 s{sCn}, 0")
        a(f"{lp}:")
        for ins, _, _ in loads:
            a(ins)
        a(f"s_add_u32 s{sCn}, s{sCn}, 1\ns_waitcnt vmcnt(0)\n{lc}:")
        for i, (_, tg, wide) in enumerate(loads):
            dst = "vcc" if i == 0 else sp(sM)
            if wide:
                a(f"v_cmp_ne_u64 {dst}, {sp(sT)}, {tg}")
            else:
                a(f"v_cmp_ne_u32 {dst}, s{sT}, {tg}")
            if i:
                a(f"s_or_b64 vcc, vcc, {sp(sM)}")
        a(f"s_cmp_eq_u64 vcc, 0\ns_cbranch_scc1 {ld}")
        a(f"s_sleep 2\ns_cmp_lt_u32 s{sCn}, {SPIN}\ns_cbranch_scc1 {lp}\n{ld}:")

    def wave_sum(self, regs, tmp):
        a = self.a
        for sh in (8, 4, 2, 1):
            for r in regs:
                a(f"v_add_f32_dpp v{r}, v{r}, v{r} row_ror:{sh} row_mask:0xf bank_mask:0xf")
        for op in ("v_permlane16_swap_b32", "v_permlane32_swap_b32"):
            for i, r in enumerate(regs):
                a(f"v_mov_b32 v{tmp + i}, v{r}")
            for i, r in enumerate(regs):
                a(f"{op} v{r}, v{tmp + i}")
            for i, r in enumerate(regs):
                a(f"v_add_f32 v{r}, v{r}, v{tmp + i}")

    def unpack8(self, dst, src):
        for i in range(4):
            self.a(f"v_lshlrev_b32 v{dst + 2 * i}, 16, v{src + i}\nv_and_b32 v{dst + 2 * i + 1}, 0xffff0000, v{src + i}")

    def ln_stats(self, x, mu, rs, tmp):
        a = self.a
        a(f"v_pk_add_f32 {vr(tmp, 2)}, {vr(x, 2)}, {vr(x + 2, 2)}")
        a(f"v_pk_mul_f32 {vr(tmp + 2, 2)}, {vr(x, 2)}, {vr(x, 2)}")
        a(f"v_pk_add_f32 {vr(tmp, 2)}, {vr(tmp, 2)}, {vr(x + 4, 2)}")
        a(f"v_pk_fma_f32 {vr(tmp + 2, 2)}, {vr(x + 2, 2)}, {vr(x + 2, 2)}, {vr(tmp + 2, 2)}")
        a(f"v_pk_add_f32 {vr(tmp, 2)}, {vr(tmp, 2)}, {vr(x + 6, 2)}")
        a(f"v_pk_fma_f32 {vr(tmp + 2, 2)}, {vr(x + 4, 2)}, {vr(x + 4, 2)}, {vr(tmp + 2, 2)}")
        a(f"v_add_f32 v{mu}, v{tmp}, v{tmp + 1}")
        a(f"v_pk_fma_f32 {vr(tmp + 2, 2)}, {vr(x + 6, 2)}, {vr(x + 6, 2)}, {vr(tmp + 2, 2)}")
        a(f"v_add_f32 v{rs}, v{tmp + 2}, v{tmp + 3}")
        self.wave_sum([mu, rs], tmp)
        a(f"v_mul_f32 v{mu}, 0x3b000000, v{mu}")
        a(f"v_mul_f32 v{rs}, 0x3b000000, v{rs}")
        a(f"v_fma_f32 v{rs}, -v{mu}, v{mu}, v{rs}")
        a(f"v_max_f32 v{rs}, 0, v{rs}")
        a(f"v_add_f32 v{rs}, 0x3727c5ac, v{rs}")
        a(f"v_rsq_f32 v{rs}, v{rs}")

    def w1_setup(self):
        a = self.a
        self.mk_srd(rG, sWG, 512 * 3584)
        self.mk_srd(rU, sWU, 512 * 3584)
        a(f"s_lshl_b32 s{sWP}, s{sW}, 10\ns_and_b32 s{sA}, s{sW}, 1\ns_lshl_b32 s{sA}, s{sA}, 2\nv_bfe_u32 v8, v1, 4, 1\nv_lshl_add_u32 v8, v8, 1, s{sA}")
        a(f"v_and_b32 v9, 7, v1\nv_xor_b32 v8, v8, v9\nv_lshrrev_b32 v9, 3, v1\nv_mul_u32_u24 v9, 3584, v9\nv_lshl_add_u32 v14, v8, 4, v9")
        a(f"s_lshl_b32 s{sB}, s{sJ}, 7\ns_mul_i32 s{sA}, s{sW}, {8 * 3584}\ns_add_u32 s{sB}, s{sB}, s{sA}\nv_add_u32 v14, s{sB}, v14")

    def w1_block(self, b, both=False):
        a = self.a
        a(f"s_add_u32 s{sWO}, s{sXG}, {b}\ns_and_b32 s{sWO}, s{sWO}, 7\ns_mul_i32 s{sWO}, s{sWO}, {64 * 3584}")
        for r, lds in ((rG, L_G), (rU, L_U)):
            if both:
                a(f"s_add_u32 m0, s{sWP}, {(lds + b * 8192 - 4096) & 0xffffffff}")
                a(f"buffer_load_dwordx4 v13, {srd(r)}, s{sWO} offen lds")
            a(f"s_add_u32 m0, s{sWP}, {lds + b * 8192}")
            a(f"buffer_load_dwordx4 v14, {srd(r)}, s{sWO} offen lds")

    def w1_blocks(self, n, both=False):
        a = self.a
        if n == 0:
            return 0
        ls, le = a.label("sp"), a.label("spe")
        a(f"s_cmp_ge_u32 s{sJ}, 28\ns_cbranch_scc1 {ls}")
        for b in range(self.nb, self.nb + n):
            self.w1_block(b, both)
        a(f"s_branch {le}\n{ls}:")
        cnt = n * (4 if both else 2)
        per = self.o["sp_lines"]
        a(f"v_min_u32 v8, {per - 1}, v1\ns_sub_u32 s{sA}, s{sJ}, 28\ns_mul_i32 s{sA}, s{sA}, {16 * per * n}\ns_and_b32 s{sB}, s{sW}, {3 if both else 7}")
        a(f"s_mul_i32 s{sB}, s{sB}, {per * cnt}\ns_add_u32 s{sA}, s{sA}, s{sB}\ns_add_u32 s{sA}, s{sA}, {self.wd_done}\nv_add_lshl_u32 v8, v8, s{sA}, 7")
        for i in range(cnt):
            a(f"global_load_dword v143, v8, {sp(sWD)}")
            if i < cnt - 1:
                a(f"v_add_u32 v8, {128 * per}, v8")
        a(f"{le}:")
        self.nb += n
        self.wd_done += 64 * per * n
        assert self.wd_done <= 14336
        return cnt

    def end(self):
        a = self.a
        if self.stamps:
            l = a.label("nost")
            a(f"s_and_b32 s{sA}, s{sW}, 3\ns_cmp_lg_u32 s{sA}, 0\ns_cbranch_scc1 {l}")
            a(f"s_lshl_b32 s{sA}, s2, 1\ns_lshr_b32 s{sB}, s{sW}, 2\ns_add_u32 s{sA}, s{sA}, s{sB}\ns_lshl_b32 s{sA}, s{sA}, 7\ns_add_u32 s{sA}, s{sA}, {STAMP}")
            a("v_mov_b32 v8, 0\ns_mov_b64 exec, 1")
            for i in range(self.nst):
                a(f"v_mov_b32 v9, s{sST + i}\nbuffer_store_dword v9, v8, {srd(rWS)}, s{sA} offen offset:{4 * i}")
            a(f"v_mov_b32 v9, s{sFAST}\nbuffer_store_dword v9, v8, {srd(rWS)}, s{sA} offen offset:124")
            a(f"{l}:")
        a("s_endpgm")

    def maybe_stop(self, name):
        if self.stop == name:
            self.a("s_waitcnt vmcnt(0) lgkmcnt(0)")
            self.bump_epoch()
            self.end()
            return True
        return False

    def bump_epoch(self):
        a = self.a
        l = a.label("noep")
        a(f"s_or_b32 s{sA}, s2, s{sW}\ns_cmp_lg_u32 s{sA}, 0\ns_cbranch_scc1 {l}")
        a(f"v_mov_b32 v8, 0\nv_mov_b32 v9, s{sT}\ns_mov_b64 exec, 1")
        a(f"buffer_store_dword v9, v8, {srd(rWS)}, 0 offen sc1\ns_mov_b64 exec, -1\n{l}:")

    def phase0(self):
        a = self.a
        a("s_load_dwordx16 s[4:19], s[0:1], 0\ns_load_dwordx8 s[20:27], s[0:1], 64")
        a("s_load_dwordx4 s[28:31], s[0:1], 96\ns_load_dwordx2 s[32:33], s[0:1], 112")
        a("s_cmp_ge_u32 s2, 256\ns_cbranch_scc1 L_exit")
        a("v_lshrrev_b32 v8, 6, v0\nv_and_b32 v1, 63, v0")
        a(f"s_and_b32 s{sXG}, s2, 7\ns_lshr_b32 s{sJ}, s2, 3\nv_readfirstlane_b32 s{sW}, v8")
        a(f"s_lshl_b32 s{sP}, s{sXG}, 5\ns_add_u32 s{sP}, s{sP}, s{sJ}")
        a(f"s_getreg_b32 s{sID}, hwreg(HW_REG_XCC_ID, 0, 4)\ns_add_u32 s{sID}, s{sID}, 1")
        a("v_lshrrev_b32 v10, 3, v1\nv_and_b32 v11, 7, v1\nv_lshlrev_b32 v12, 10, v10\nv_lshl_add_u32 v12, v11, 4, v12")
        a(f"s_lshl_b32 s{sE}, s{sJ}, 3\ns_add_u32 s{sE}, s{sE}, s{sW}\ns_lshl_b32 s{sE}, s{sE}, 13\ns_lshl_b32 s{sA}, s{sXG}, 7\ns_add_u32 s{sE}, s{sE}, s{sA}")
        a(f"s_mul_i32 s{sF}, s{sW}, 1040")
        a("s_waitcnt lgkmcnt(0)")
        self.stamp()
        self.mk_srd(rK, sK, 2097152)
        self.mk_srd(rV, sV, 2097152)
        a(f"s_add_u32 m0, s{sF}, {L_KT + 1040}\nbuffer_load_dwordx4 v12, {srd(rK)}, s{sE} offen lds")
        a(f"s_add_u32 m0, s{sF}, {L_VT}\nbuffer_load_dwordx4 v12, {srd(rV)}, s{sE} offen lds")
        a(f"s_load_dword s{sT}, {sp(sWS)}, 0")
        a(f"s_lshl_b32 s{sA}, s{sP}, 2\ns_load_dword s{sDA}, {sp(sSD)}, s{sA}")
        l0 = a.label("nw0")
        a(f"s_cmp_lg_u32 s{sW}, 0\ns_cbranch_scc1 {l0}")
        a(f"s_sub_u32 s{sA}, s{sE}, 8192\nv_add_u32 v13, s{sA}, v12\ns_mov_b32 m0, {L_KT}")
        a(f"v_mov_b32 v8, s{sP}\nv_mov_b32 v9, s{sID}")
        a(f"s_mov_b32 exec_lo, 0\ns_mov_b32 exec_hi, 0xffffff00\nbuffer_load_dwordx4 v13, {srd(rK)}, 0 offen lds")
        a(f"s_mov_b64 exec, 1\nglobal_store_byte v8, v9, {sp(sDBG)}\ns_mov_b64 exec, -1\n{l0}:")
        self.mk_srd(rSK, sSK, 2097152)
        self.mk_srd(rWS, sWS, WS_BYTES)
        a(f"s_lshl_b32 s{sA}, s{sXG}, 3\ns_add_u32 s{sA}, s{sA}, s{sW}\ns_lshl_b32 s{sA}, s{sA}, 6\nv_lshl_add_u32 v13, v10, 3, s{sA}")
        a(f"s_lshl_b32 s{sA}, s{sXG}, 5\nv_and_b32 v14, 31, v1\nv_add_u32 v14, s{sA}, v14")
        a(f"s_lshl_b32 s{sA}, s{sP}, 13\nv_lshl_add_u32 v22, v0, 4, s{sA}\nv_add_u32 v23, -4, v22")
        a(f"s_lshl_b32 s{sA}, s{sP}, 3\ns_add_u32 s{sA}, s{sA}, s{sW}\ns_lshl_b32 s{sA}, s{sA}, 10\nv_lshl_add_u32 v15, v1, 4, s{sA}")
        a("s_barrier")
        a(f"global_load_dwordx2 v[30:31], v13, {sp(sSH)}")
        a(f"buffer_load_dwordx4 v[16:19], v22, {srd(rSK)}, 0 offen\nbuffer_load_dword v20, v23, {srd(rSK)}, 0 offen")
        lm, lj = a.label("wm"), a.label("wj")
        a(f"s_cmp_ge_u32 s{sW}, 2\ns_cbranch_scc1 {lm}")
        a(f"s_getpc_b64 {sp(sM)}\nL_pc:\ns_lshl_b32 s{sA}, s{sJ}, 7\nv_lshl_add_u32 v13, v11, 12, s{sA}\nv_min_u32 v13, L_last-L_pc, v13\nglobal_load_dword v82, v13, {sp(sM)}")
        a(f"s_lshl_b32 s{sA}, s{sP}, 13\ns_add_u32 s{sA}, s{sA}, {R1}\ns_mul_i32 s{sB}, s{sP}, 3072\ns_add_u32 s{sB}, s{sB}, {MODP}")
        a(f"s_cmp_eq_u32 s{sW}, 0\ns_cselect_b32 s{sA}, s{sA}, s{sB}\ns_cselect_b32 s{sB}, 63, 23\nv_min_u32 v13, s{sB}, v1\nv_lshlrev_b32 v13, 7, v13")
        a(f"buffer_load_dword v80, v13, {srd(rWS)}, s{sA} offen sc1")
        a(f"s_lshl_b32 s{sA}, s{sXG}, 3\ns_and_b32 s{sB}, s{sJ}, 7\ns_add_u32 s{sA}, s{sA}, s{sB}\ns_lshl_b32 s{sA}, s{sA}, 7")
        a(f"s_lshr_b32 s{sB}, s{sJ}, 3\ns_lshl_b32 s{sB}, s{sB}, 13\ns_add_u32 s{sA}, s{sA}, s{sB}\ns_add_u32 s{sA}, s{sA}, {FL1}\nv_mov_b32 v13, 0")
        a(f"buffer_load_dword v81, v13, {srd(rWS)}, s{sA} offen sc1\nbuffer_load_dword v83, v13, {srd(rWS)}, s{sA} offen sc1")
        a(f"s_branch {lj}\n{lm}:")
        a(f"s_lshl_b32 s{sA}, s{sJ}, 5\nv_lshl_add_u32 v13, v10, 1, s{sA}")
        a(f"global_load_ushort v80, v13, {sp(sC)}\nglobal_load_ushort v81, v13, {sp(sC)} offset:16")
        a(f"s_sub_u32 s{sA}, s{sW}, 2\ns_lshl_b32 s{sA}, s{sA}, 10\ns_lshl_b32 s{sB}, s{sXG}, 7\ns_add_u32 s{sA}, s{sA}, s{sB}")
        a(f"s_mul_i32 s{sB}, s{sJ}, {16 * 6144}\ns_add_u32 s{sA}, s{sA}, s{sB}")
        a(f"v_mul_u32_u24 v13, 6144, v10\nv_lshl_add_u32 v13, v11, 4, v13\nv_add_u32 v13, s{sA}, v13\nv_add_u32 v22, {8 * 6144}, v13")
        a(f"global_load_dwordx4 v[72:75], v13, {sp(sWM)}\nglobal_load_dwordx4 v[76:79], v22, {sp(sWM)}")
        a(f"{lj}:")
        a("v_mov_b32 v24, 0\nv_mov_b32 v25, 0\nv_mov_b32 v26, 0\nv_mov_b32 v27, 0")
        lz = a.label("nz")
        a(f"s_cmp_lg_u32 s{sW}, 1\ns_cbranch_scc1 {lz}")
        a(f"v_lshrrev_b32 v8, 5, v1\nv_and_b32 v9, 31, v1\nv_mul_u32_u24 v8, 4608, v8\nv_lshl_add_u32 v8, v9, 4, v8\nv_add_u32 v8, {L_KVR + 4096}, v8")
        a("ds_write_b128 v8, v[24:27]")
        a(f"v_and_b32 v8, 1, v1\nv_bfe_u32 v9, v1, 1, 1\nv_lshlrev_b32 v8, 4, v8\nv_mul_u32_u24 v9, {KO - KE}, v9\nv_add_u32 v8, v8, v9")
        a(f"v_bfe_u32 v9, v1, 2, 1\nv_mul_u32_u24 v9, {KCH}, v9\nv_add3_u32 v8, v8, v9, 0\nv_add_u32 v8, {L_PART}, v8")
        a(f"ds_write_b128 v8, v[24:27]\n{lz}:")
        for i in range(19):
            a(f"v_mov_b32 v{32 + i}, 0")
        a(f"s_lshl_b32 s{sA}, s{sW}, 4\nv_mul_u32_u24 v8, 1040, v11\nv_lshl_add_u32 v8, v10, 1, v8\nv_add_u32 v8, s{sA}, v8")
        a("s_waitcnt vmcnt(7) lgkmcnt(0)")
        a(f"s_mul_i32 s{sT}, s{sT}, 0x9E3779B1\ns_add_u32 s{sT}, s{sT}, 0x7F4A7C15\ns_mul_i32 s{sT + 1}, s{sT}, 0x85EBCA6B\ns_xor_b32 s{sT + 1}, s{sT + 1}, 0x5BD1E995")
        a(f"s_and_b32 s{sDB}, s{sDA}, 0xffff0000\ns_lshl_b32 s{sDA}, s{sDA}, 16")
        a("s_barrier")
        self.stamp()
        a(f"global_load_ubyte v21, v14, {sp(sDBG)} sc1")
        for i in range(3):
            a(f"ds_read_u16_d16_hi v{32 + i}, v8 offset:{L_KT + (5 + i) * 128}")
        for i in range(8):
            a(f"ds_read_u16_d16_hi v{35 + i}, v8 offset:{L_KT + 1040 + i * 128}")
        a("s_waitcnt vmcnt(7)")
        a("v_lshlrev_b32 v28, 16, v30\nv_and_b32 v29, 0xffff0000, v30\nv_lshlrev_b32 v30, 16, v31\nv_and_b32 v31, 0xffff0000, v31")
        a("s_waitcnt lgkmcnt(7)")
        for i in range(8):
            a(f"ds_read_u16_d16_hi v{43 + i}, v8 offset:{L_VT + i * 128}")
        a("s_waitcnt lgkmcnt(8)")
        for i in range(8):
            a(f"v_mul_f32 v{52 + i}, v28, v{35 + i}")
        for jj in (1, 2, 3):
            for i in range(8):
                a(f"v_fmac_f32 v{52 + i}, v{28 + jj}, v{35 + i - jj}")
        a("s_waitcnt lgkmcnt(0)")
        for i in range(8):
            a(f"v_mul_f32 v{52 + i}, v{52 + i}, v{43 + i}")
        for i in range(4):
            a(f"v_cvt_pk_bf16_f32 v{60 + i}, v{59 - 2 * i}, v{58 - 2 * i}")
        a(f"v_lshlrev_b32 v12, 12, v10\nv_lshlrev_b32 v9, 4, v11\nv_sub_u32 v12, v12, v9\nv_add_u32 v12, 112, v12")
        a(f"s_lshl_b32 s{sA}, s{sXG}, 3\ns_add_u32 s{sA}, s{sA}, s{sW}\ns_lshl_b32 s{sA}, s{sA}, 15\ns_lshl_b32 s{sB}, s{sJ}, 7")
        a(f"s_sub_u32 s{sA}, s{sA}, s{sB}\ns_add_u32 s{sE}, s{sA}, {R1 + 4096 - 128}")
        a("v_and_b32 v8, 255, v0\nv_cmp_ne_u32 vcc, 0, v8\nv_lshrrev_b32 v9, 8, v0")
        a(f"v_mul_u32_u24 v9, {KCH}, v9\nv_lshl_add_u32 v8, v8, 4, v9\nv_add_u32 v8, {L_PART}, v8")
        a("s_waitcnt vmcnt(5)\nv_cndmask_b32 v20, 0, v20, vcc")
        a("v_alignbit_b32 v25, v17, v16, 16\nv_alignbit_b32 v26, v18, v17, 16\nv_alignbit_b32 v27, v19, v18, 16\nv_alignbit_b32 v24, v16, v20, 16")
        a(f"ds_write_b128 v8, v[16:19] offset:{KE}\nds_write_b128 v8, v[24:27] offset:{KO}")
        a("s_waitcnt lgkmcnt(0)\ns_barrier")
        la = a.label("na")
        a(f"s_cmp_ge_u32 s{sW}, 4\ns_cbranch_scc1 {la}")
        a(f"v_bfe_u32 v8, v1, 1, 3\nv_lshrrev_b32 v9, 4, v1\nv_lshl_add_u32 v8, v9, 2, v8\nv_lshlrev_b32 v8, 2, v8")
        a(f"v_and_b32 v9, 1, v1\nv_xor_b32 v9, 1, v9\nv_mul_u32_u24 v9, {KO - KE}, v9\nv_add_u32 v8, v8, v9")
        a(f"s_lshr_b32 s{sA}, s{sW}, 1\ns_mul_i32 s{sA}, s{sA}, {KCH}\ns_and_b32 s{sB}, s{sW}, 1\ns_lshl_b32 s{sB}, s{sB}, 8")
        a(f"s_add_u32 s{sA}, s{sA}, s{sB}\ns_add_u32 s{sA}, s{sA}, {L_PART + KE - 28}\nv_add_u32 v8, s{sA}, v8")
        for a2 in range(4):
            for aa in range(2):
                for rho in range(4):
                    d = 128 + (rho * 8 + a2 * 2 + aa) * 4
                    o = aa * 128 + rho * 16
                    a(f"ds_read2_b32 {vr(d, 2)}, v8 offset0:{o} offset1:{o + 1}")
                    a(f"ds_read2_b32 {vr(d + 2, 2)}, v8 offset0:{o + 2} offset1:{o + 3}")
            if a2 < 3:
                a("v_add_u32 v8, 1024, v8")
        a(f"{la}:")
        lp, ld = a.label("id"), a.label("iddone")
        a(f"s_mov_b32 s{sFAST}, 0\ns_mov_b32 s{sCn}, 0")
        if not self.force_slow:
            a(f"s_waitcnt vmcnt(0)\n{lp}:\nv_cmp_ne_u32 vcc, s{sID}, v21\ns_cmp_eq_u64 vcc, 0\ns_cselect_b32 s{sFAST}, 1, 0\ns_cbranch_scc1 {ld}")
            a(f"s_add_u32 s{sCn}, s{sCn}, 1\ns_cmp_ge_u32 s{sCn}, 6\ns_cbranch_scc1 {ld}")
            a(f"global_load_ubyte v21, v14, {sp(sDBG)} sc1\ns_waitcnt vmcnt(0)\ns_branch {lp}\n{ld}:")
        self.local_stores([f"buffer_store_dwordx4 v[60:63], v12, {srd(rWS)}, s{sE} offen"])
        self.stamp()
        self.flag_store(FL1, sW, sJ)
        self.stamp()
        lm2 = a.label("nm")
        a(f"s_cmp_lt_u32 s{sW}, 2\ns_cbranch_scc1 {lm2}")
        for r in (80, 81):
            a(f"v_lshlrev_b32 v{r}, 16, v{r}\nv_mul_f32 v8, 0xbfb8aa3b, v{r}\nv_exp_f32 v8, v8\nv_add_f32 v8, 1.0, v8\nv_rcp_f32 v8, v8")
            a(f"v_mul_f32 v{r}, v{r}, v8\nv_cvt_pk_bf16_f32 v{r}, v{r}, v{r}\nv_lshlrev_b32 v{r}, 16, v{r}")
        self.unpack8(32, 72)
        self.unpack8(40, 76)
        for e in range(8):
            a(f"v_mul_f32 v{32 + e}, v80, v{32 + e}")
        for e in range(8):
            a(f"v_fmac_f32 v{32 + e}, v81, v{40 + e}")
        for e in range(4):
            a(f"v_permlane32_swap_b32 v{32 + e}, v{36 + e}")
        for e in range(4):
            a(f"v_add_f32 v{32 + e}, v{32 + e}, v{36 + e}")
        for e in range(2):
            a(f"v_permlane16_swap_b32 v{32 + e}, v{34 + e}")
        for e in range(2):
            a(f"v_add_f32 v{32 + e}, v{32 + e}, v{34 + e}")
        for e in range(2):
            a(f"v_add_f32_dpp v{32 + e}, v{32 + e}, v{32 + e} row_ror:8 row_mask:0xf bank_mask:0xf")
        a(f"v_mov_b32 v34, s{sT}\nv_mov_b32 v35, s{sT + 1}")
        a("v_and_b32 v8, 7, v1\nv_lshrrev_b32 v9, 4, v1\nv_lshl_add_u32 v8, v8, 2, v9\nv_lshlrev_b32 v8, 4, v8")
        a(f"s_mul_i32 s{sA}, s{sP}, 3072\ns_lshl_b32 s{sB}, s{sW}, 9\ns_add_u32 s{sA}, s{sA}, s{sB}\ns_add_u32 s{sE}, s{sA}, {MODP - 1024}")
        a("s_mov_b32 exec_lo, 0x00ff00ff\ns_mov_b32 exec_hi, 0x00ff00ff")
        self.local_stores([f"buffer_store_dwordx4 v[32:35], v8, {srd(rWS)}, s{sE} offen"])
        a(f"s_mov_b64 exec, -1\n{lm2}:")
        a(f"s_and_b32 s{sB}, s{sW}, 3\ns_lshl_b32 s{sB}, s{sB}, 3\ns_sub_u32 s{sB}, 31, s{sB}\nv_sub_u32 v8, s{sB}, v10\nv_lshlrev_b32 v8, 2, v8")
        a(f"s_lshr_b32 s{sB}, s{sJ}, 2\nv_lshlrev_b32 v12, 4, v0\ns_lshl_b32 s{sE}, s{sP}, 13\ns_add_u32 s{sE}, s{sE}, {R1}")
        self.flag_poll(FL1, sB, 8)
        a(f"buffer_load_dwordx4 v[16:19], v12, {srd(rWS)}, s{sE} offen sc1")
        self.stamp()
        a(f"v_lshrrev_b32 v9, 8, v0\nv_lshl_add_u32 v8, v9, 9, v12\nv_add_u32 v8, {L_KVR}, v8")
        a("s_waitcnt vmcnt(0)\nds_write_b128 v8, v[16:19]\ns_waitcnt lgkmcnt(0)\ns_barrier")
        self.stamp()

    def conv(self):
        a = self.a
        lh, lj = a.label("help"), a.label("cj")
        a(f"s_cmp_ge_u32 s{sW}, 4\ns_cbranch_scc1 {lh}")
        a("v_and_b32 v9, 15, v1\nv_lshrrev_b32 v10, 4, v1\nv_lshlrev_b32 v8, 4, v10\nv_lshlrev_b32 v11, 5, v9\nv_sub_u32 v8, v8, v11")
        a(f"s_lshr_b32 s{sA}, s{sW}, 1\ns_mul_i32 s{sA}, s{sA}, 4608\ns_and_b32 s{sB}, s{sW}, 1\ns_lshl_b32 s{sB}, s{sB}, 8")
        a(f"s_add_u32 s{sA}, s{sA}, s{sB}\ns_add_u32 s{sA}, s{sA}, {L_KVR + 480}\nv_add_u32 v8, s{sA}, v8")

        def rd(rho, b):
            return f"ds_read_b128 {vr(32 + (rho & 1) * 32 + b * 4, 4)}, v8 offset:{512 * (7 - b) + 64 * rho}"

        for b in range(8):
            a(rd(0, b))
        a(f"global_load_dwordx4 v[2:5], v15, {sp(sQ)}")
        a(f"v_lshl_add_u32 v11, v10, 2, v9\nv_and_b32 v11, 15, v11\nv_lshl_add_u32 v11, v10, 4, v11\nv_lshlrev_b32 v11, 4, v11")
        a(f"s_lshl_b32 s{sA}, s{sW}, 13\ns_add_u32 s{sA}, s{sA}, {L_PART}\nv_add_u32 v11, s{sA}, v11")
        for rho in range(4):
            def mf(aa, b):
                t = aa + b
                c = "0" if (rho == 0 and b == 0) else vr(96 + 4 * t, 4)
                return f"v_mfma_f32_16x16x32_bf16 {vr(96 + 4 * t, 4)}, {vr(128 + (rho * 8 + aa) * 4, 4)}, {vr(32 + (rho & 1) * 32 + b * 4, 4)}, {c}"
            if rho < 3:
                n = 0
                for b in range(8):
                    if rho == 0:
                        a(f"s_waitcnt lgkmcnt({min(15, 7 - b + min(n, 8))})")
                    elif b == 0:
                        a("s_waitcnt lgkmcnt(0)")
                    for aa in range(8 - b):
                        a(mf(aa, b))
                        if aa % 2 == 1 and n < 8:
                            a(rd(rho + 1, n))
                            n += 1
                assert n == 8
            else:
                a("s_waitcnt lgkmcnt(0)")
                order = [7, 6, 5, 4, 3, 2, 1, 0]
                for idx, t in enumerate(order):
                    for b in range(t + 1):
                        a(mf(t - b, b))
                    if idx >= 2:
                        tp = order[idx - 2]
                        a(f"ds_write_b128 v11, {vr(96 + 4 * tp, 4)} offset:{1024 * tp}")
                for tp in order[-2:]:
                    a(f"ds_write_b128 v11, {vr(96 + 4 * tp, 4)} offset:{1024 * tp}")
        a(f"s_branch {lj}\n{lh}:")
        l4 = a.label("n4")
        a(f"s_cmp_lg_u32 s{sW}, 4\ns_cbranch_scc1 {l4}")
        a(f"v_and_b32 v8, 31, v1\nv_mul_u32_u24 v8, 3072, v8\nv_lshrrev_b32 v9, 5, v1\nv_mul_u32_u24 v10, 1536, v9\nv_add_u32 v8, v8, v10")
        a(f"s_mul_i32 s{sA}, s{sXG}, {32 * 3072}\ns_lshl_b32 s{sB}, s{sJ}, 4\ns_add_u32 s{sA}, s{sA}, s{sB}\ns_add_u32 s{sE}, s{sA}, {MODP}")
        self.tagged_loads([(f"buffer_load_dwordx4 {vr(32 + 4 * i, 4)}, v8, {srd(rWS)}, s{sE} offen offset:{512 * i} sc1", vr(34 + 4 * i, 2), True) for i in range(3)])
        regs = [32, 33, 36, 37, 40, 41]
        for sh in (8, 4, 2, 1):
            for r in regs:
                a(f"v_add_f32_dpp v{r}, v{r}, v{r} row_ror:{sh} row_mask:0xf bank_mask:0xf")
        for i, r in enumerate(regs):
            a(f"v_mov_b32 v{44 + i}, v{r}")
        for i, r in enumerate(regs):
            a(f"v_permlane16_swap_b32 v{r}, v{44 + i}")
        for i, r in enumerate(regs):
            a(f"v_add_f32 v{r}, v{r}, v{44 + i}")
        a(f"v_cvt_pk_bf16_f32 v32, v32, v33\nv_cvt_pk_bf16_f32 v33, v36, v37\nv_cvt_pk_bf16_f32 v34, v40, v41\nv_mov_b32 v35, s{sT}")
        a(f"v_lshlrev_b32 v8, 4, v9\ns_lshl_b32 s{sA}, s{sP}, 5\ns_add_u32 s{sA}, s{sA}, {MODF}")
        a(f"s_mov_b32 exec_lo, 1\ns_mov_b32 exec_hi, 1\nbuffer_store_dwordx4 v[32:35], v8, {srd(rWS)}, s{sA} offen sc1\ns_mov_b64 exec, -1\n{l4}:")
        a(f"global_load_dwordx4 v[2:5], v15, {sp(sQ)}")
        self.w1_setup()
        a(f"v_add_u32 v13, {(-32 * 3584) & 0xffffffff}, v14")
        self.w1_blocks(self.o["nb1"], True)
        a(f"{lj}:")
        a("v_lshrrev_b32 v8, 3, v1\nv_bfe_u32 v9, v1, 1, 2\nv_lshl_add_u32 v8, v9, 2, v8\nv_and_b32 v8, 15, v8\nv_lshl_add_u32 v8, v9, 4, v8")
        a(f"v_and_b32 v9, 1, v1\nv_lshl_add_u32 v8, v8, 1, v9\nv_lshlrev_b32 v8, 3, v8\ns_lshl_b32 s{sA}, s{sW}, 10\ns_add_u32 s{sA}, s{sA}, {L_PART}")
        a(f"v_add_u32 v8, s{sA}, v8\nv_xor_b32 v9, 128, v8")
        a(f"s_lshl_b32 s{sA}, s{sW}, 9\ns_sub_u32 s{sA}, {L_KVR + 4092 - 256}, s{sA}\nv_lshlrev_b32 v10, 2, v1\nv_sub_u32 v10, s{sA}, v10")
        a("s_waitcnt lgkmcnt(0)\ns_barrier")
        self.stamp()
        for h, ad in ((0, 8), (1, 9)):
            for mw in range(4):
                a(f"ds_read_b64 {vr(32 + h * 8 + mw * 2, 2)}, v{ad} offset:{8192 * mw}")
            for ch in range(2):
                a(f"ds_read_b32 v{48 + h * 2 + ch}, v10 offset:{4608 * ch + 256 * (1 - h)}")
        a(f"v_mov_b32 v62, s{sT}\nv_mov_b32 v63, s{sT + 1}\nv_mov_b32 v66, s{sT}\nv_mov_b32 v67, s{sT + 1}")
        a(f"s_mul_i32 s{sA}, s{sW}, {ZG}\ns_lshl_b32 s{sB}, s{sP}, 11\ns_add_u32 s{sA}, s{sA}, s{sB}\ns_add_u32 s{sE}, s{sA}, {Z}\nv_lshlrev_b32 v11, 4, v1")
        for h in range(2):
            a(f"s_waitcnt lgkmcnt({6 * (1 - h)})")
            for ch in range(2):
                p = 32 + h * 8 + ch * 4
                kv = 48 + h * 2 + ch
                a(f"v_pk_add_f32 {vr(p, 2)}, {vr(p, 2)}, {vr(p + 2, 2)}")
                a(f"v_and_b32 v52, 0xffff0000, v{kv}\nv_lshlrev_b32 v53, 16, v{kv}")
                a(f"v_fmac_f32 v{p}, s{sDA + ch}, v52\nv_fmac_f32 v{p + 1}, s{sDA + ch}, v53")
            p = 32 + h * 8
            a(f"v_cvt_pk_bf16_f32 v{60 + 4 * h}, v{p}, v{p + 4}\nv_cvt_pk_bf16_f32 v{61 + 4 * h}, v{p + 1}, v{p + 5}")
            a(f"buffer_store_dwordx4 {vr(60 + 4 * h, 4)}, v11, {srd(rWS)}, s{sE} offen offset:{1024 * h} sc1")
        self.stamp()

    def p2(self):
        a = self.a
        self.w1_setup()
        a(f"s_mov_b32 s{sE}, {MODF}\nv_lshlrev_b32 v10, 4, v0\ns_barrier")

        def ln1():
            n = self.w1_blocks(self.o["nb2"])
            a(f"s_waitcnt vmcnt({n + 3})")
            self.unpack8(40, 2)
            self.ln_stats(40, 6, 7, 56)
            return n

        self.tagged_loads([(f"buffer_load_dwordx4 v[28:31], v10, {srd(rWS)}, s{sE} offen sc1", "v31", False)], ln1)
        a(f"v_and_b32 v9, 1, v0\nv_mul_u32_u24 v9, 3072, v9\nv_lshrrev_b32 v8, 1, v0\nv_lshl_add_u32 v8, v8, 2, v9\nv_add_u32 v8, {L_MOD}, v8")
        for i in range(3):
            a(f"ds_write_b32 v8, v{28 + i} offset:{1024 * i}")
        self.stamp()
        a(f"v_lshrrev_b32 v8, 2, v0\nv_and_b32 v9, 3, v0\nv_lshlrev_b32 v10, 11, v8\nv_lshl_add_u32 v10, v9, 4, v10")
        a(f"s_mul_i32 s{sA}, s{sXG}, {ZG}\ns_lshl_b32 s{sB}, s{sJ}, 6\ns_add_u32 s{sA}, s{sA}, s{sB}\ns_add_u32 s{sE}, s{sA}, {Z}\ns_add_u32 s{sF}, s{sE}, {128 * 2048}")
        a(f"v_mul_u32_u24 v9, 2080, v9\nv_lshl_add_u32 v11, v8, 2, v9\nv_add_u32 v11, {L_PART}, v11")
        X, N, T1, T2, SB, CB, M = 40, 48, 56, 64, 72, 80, 96
        a("s_waitcnt lgkmcnt(0)\ns_barrier")

        def behind():
            a(f"s_lshl_b32 s{sA}, s{sP}, 13\ns_add_u32 s{sA}, s{sA}, {R1}\nv_lshlrev_b32 v9, 4, v0\nbuffer_load_dword v142, v9, {srd(rWS)}, s{sA} offen sc1")
            if self.o["nb3"]:
                a("s_barrier")
            n = self.w1_blocks(self.o["nb3"])
            a(f"v_lshlrev_b32 v9, 4, v1\nv_add_u32 v9, {L_MOD}, v9")
            for i in range(5):
                a(f"ds_read_b128 {vr(M + 4 * i, 4)}, v9 offset:{1024 * i}")
            for i in range(0, 8, 2):
                a(f"v_pk_add_f32 {vr(N + i, 2)}, {vr(X + i, 2)}, v[6:7] op_sel_hi:[1,0] neg_lo:[0,1] neg_hi:[0,1]")
            for i in range(0, 8, 2):
                a(f"v_pk_mul_f32 {vr(N + i, 2)}, {vr(N + i, 2)}, v[6:7] op_sel:[0,1] op_sel_hi:[1,1]")
            a("s_waitcnt lgkmcnt(0)")
            self.unpack8(T1, M)
            self.unpack8(T2, M + 4)
            for i in range(0, 8, 2):
                a(f"v_pk_add_f32 {vr(T1 + i, 2)}, {vr(T1 + i, 2)}, {vr(N + i, 2)}")
            for i in range(0, 8, 2):
                a(f"v_pk_fma_f32 {vr(N + i, 2)}, {vr(N + i, 2)}, {vr(T2 + i, 2)}, {vr(T1 + i, 2)}")
            self.unpack8(T1, M + 8)
            for i in range(0, 8, 2):
                a(f"v_pk_mul_f32 {vr(N + i, 2)}, {vr(N + i, 2)}, {vr(T1 + i, 2)}")
            self.unpack8(SB, M + 12)
            self.unpack8(CB, M + 16)
            a(f"v_mov_b32 v8, {f2h(ALPHA)}")
            for i in range(0, 8, 2):
                a(f"v_pk_fma_f32 {vr(CB + i, 2)}, {vr(CB + i, 2)}, v[8:9], v[8:9] op_sel_hi:[1,0,0]")
            for i in range(0, 8, 2):
                a(f"v_pk_mul_f32 {vr(SB + i, 2)}, {vr(SB + i, 2)}, v[8:9] op_sel_hi:[1,0]")
            a(f"v_lshlrev_b32 v9, 4, v1\ns_mul_i32 s{sA}, s{sW}, 1040\ns_add_u32 s{sA}, s{sA}, {L_PART}\nv_add_u32 v12, s{sA}, v9")
            a("v_lshrrev_b32 v13, 1, v1\nv_and_b32 v9, 1, v1\nv_lshlrev_b32 v13, 8, v13\nv_lshl_add_u32 v13, v9, 4, v13")
            return n + 1

        self.tagged_loads([(f"buffer_load_dwordx4 v[28:31], v10, {srd(rWS)}, s{sE} offen sc1", "v[30:31]", True),
                           (f"buffer_load_dwordx4 v[32:35], v10, {srd(rWS)}, s{sF} offen sc1", "v[34:35]", True)], behind)
        a("ds_write_b32 v11, v28\nds_write_b32 v11, v29 offset:1040\nds_write_b32 v11, v32 offset:512\nds_write_b32 v11, v33 offset:1552")
        self.stamp()
        a(f"s_lshl_b32 s{sA}, s{sP}, 13\ns_lshl_b32 s{sB}, s{sW}, 5\ns_add_u32 s{sA}, s{sA}, s{sB}\ns_add_u32 s{sE}, s{sA}, {R1}")
        a("s_waitcnt lgkmcnt(0)\ns_barrier\nds_read_b128 v[36:39], v12\ns_waitcnt lgkmcnt(0)")
        self.unpack8(T2, 36)
        for i in range(0, 8, 2):
            a(f"v_pk_fma_f32 {vr(X + i, 2)}, {vr(N + i, 2)}, {vr(T2 + i, 2)}, {vr(X + i, 2)}")
        self.ln_stats(X, 6, 7, T1)
        for i in range(0, 8, 2):
            a(f"v_pk_add_f32 {vr(N + i, 2)}, {vr(X + i, 2)}, v[6:7] op_sel_hi:[1,0] neg_lo:[0,1] neg_hi:[0,1]")
        for i in range(0, 8, 2):
            a(f"v_pk_mul_f32 {vr(CB + i, 2)}, {vr(CB + i, 2)}, v[6:7] op_sel:[0,1] op_sel_hi:[1,1]")
        for i in range(0, 8, 2):
            a(f"v_pk_fma_f32 {vr(N + i, 2)}, {vr(N + i, 2)}, {vr(CB + i, 2)}, {vr(SB + i, 2)}")
        for d, (p, q) in enumerate(((0, 1), (2, 3), (4, 5), (6, 7))):
            a(f"v_cvt_pk_bf16_f32 v{28 + d}, v{N + p}, v{N + q}")
        for i in range(4):
            a(f"v_cvt_pk_bf16_f32 v{2 + i}, v{X + 2 * i}, v{X + 2 * i + 1}")
        self.local_stores([f"buffer_store_dwordx4 v[28:31], v13, {srd(rWS)}, s{sE} offen",
                           f"global_store_dwordx4 v15, v[2:5], {sp(sOUT)}"])
        self.stamp()
        a("v_bfe_u32 v8, v1, 3, 1\nv_lshlrev_b32 v8, 13, v8\nv_and_b32 v9, 7, v1\nv_lshl_add_u32 v8, v9, 5, v8")
        a("v_lshrrev_b32 v9, 5, v1\nv_lshl_add_u32 v8, v9, 8, v8\nv_bfe_u32 v9, v1, 4, 1\nv_lshl_add_u32 v46, v9, 4, v8\nv_add_u32 v47, 16384, v46")
        a("v_lshrrev_b32 v8, 4, v1\nv_bfe_u32 v9, v1, 2, 2\nv_lshl_add_u32 v8, v8, 3, v9\nv_lshlrev_b32 v8, 7, v8")
        a("v_bfe_u32 v9, v1, 3, 2\nv_lshl_add_u32 v8, v9, 5, v8\nv_and_b32 v9, 3, v1\nv_lshl_add_u32 v10, v9, 3, v8")
        for nt in range(1, 4):
            a(f"v_xor_b32 v{10 + nt}, {32 * nt}, v10")
        for nt in range(4):
            a(f"v_add_u32 v{40 + nt}, {L_U}, v{10 + nt}")
        a(f"s_lshr_b32 s{sE}, s{sJ}, 2\ns_and_b32 s{sF}, s{sJ}, 3\ns_lshl_b32 s{sF}, s{sF}, 3\ns_add_u32 s{sF}, s{sF}, s{sW}")
        self.flag_store(FL3, sE, sF)
        self.bump_epoch()
        a("s_barrier")

    def spare(self):
        a = self.a
        a(f"s_sub_u32 s{sE}, s{sJ}, 28\nv_lshlrev_b32 v8, 7, v0")
        k = 0
        for task in self.o["spare"]:
            if task == "z":
                a(f"s_mul_i32 s{sA}, s{sXG}, {ZG}\ns_mul_i32 s{sB}, s{sE}, 98304\ns_add_u32 s{sA}, s{sA}, s{sB}\ns_add_u32 s{sA}, s{sA}, {Z + 0x80000}")
                a(f"buffer_load_dword v{16 + k}, v8, {srd(rWS)}, s{sA} offen sc1\nv_add_u32 v9, 65536, v8\nv_min_u32 v9, {98304 - 128}, v9")
                a(f"buffer_load_dword v{17 + k}, v9, {srd(rWS)}, s{sA} offen sc1")
            elif task == "y":
                a(f"s_mul_i32 s{sA}, s{sXG}, {ZG}\ns_lshl_b32 s{sB}, s{sE}, 17\ns_add_u32 s{sA}, s{sA}, s{sB}\ns_add_u32 s{sA}, s{sA}, {Z}")
                a(f"buffer_load_dword v{16 + k}, v8, {srd(rWS)}, s{sA} offen sc1\nv_add_u32 v9, 65536, v8")
                a(f"buffer_load_dword v{17 + k}, v9, {srd(rWS)}, s{sA} offen sc1")
            elif task == "d":
                n = (self.sp_end - self.wd_done) // 4
                a(f"s_mul_i32 s{sA}, s{sE}, {n}\ns_add_u32 s{sA}, s{sA}, {self.wd_done}\ns_lshl_b32 s{sA}, s{sA}, 7")
                for i in range(0, n, 512):
                    a(f"v_add_u32 v9, {128 * i}, v8\nv_min_u32 v9, {128 * (n - 1)}, v9\nv_add_u32 v9, s{sA}, v9\nglobal_load_dword v{16 + k}, v9, {sp(sWD)}")
            elif task == "o":
                a(f"s_lshl_b32 s{sA}, s{sXG}, 2\ns_add_u32 s{sA}, s{sA}, s{sE}\ns_lshl_b32 s{sA}, s{sA}, 16\nv_add_u32 v9, s{sA}, v8")
                a(f"global_load_dword v{16 + k}, v9, {sp(sOUT)} sc1")
            else:
                a(f"s_add_u32 s{sA}, s{sXG}, {task}\ns_and_b32 s{sA}, s{sA}, 7\ns_lshl_b32 s{sA}, s{sA}, 2\ns_add_u32 s{sA}, s{sA}, s{sE}\ns_mul_i32 s{sA}, s{sA}, 57344")
                a(f"v_min_u32 v9, {57344 - 128}, v8\nbuffer_load_dword v{16 + k}, v9, {srd(rG)}, s{sA} offen\nbuffer_load_dword v{17 + k}, v9, {srd(rU)}, s{sA} offen")
            a("s_barrier")
            k += 2
        a("s_waitcnt vmcnt(0)")

    def gemm1(self):
        a = self.a
        ACC, HB, WF = 80, 48, 16
        DEPTH, D0, AHEAD, SLOTS = self.o["depth"], self.o["d0"], 4, 6
        lsp, lg2 = a.label("work"), a.label("g2")
        a(f"s_cmp_lt_u32 s{sJ}, 28\ns_cbranch_scc1 {lsp}")
        n0 = self.nst
        self.stamp()
        self.sp_end = 14336 - 28 * 8 * self.o["wk_lines"]
        self.spare()
        self.stamp()
        for x in self.wd_dma():
            a(x)
        a("s_waitcnt vmcnt(0)")
        self.stamp()
        self.nst = n0
        a(f"s_branch {lg2}\n{lsp}:")
        a(f"s_lshl_b32 s{sF}, s{sXG}, 3\ns_add_u32 s{sF}, s{sF}, s{sW}\ns_lshl_b32 s{sF}, s{sF}, 15\ns_add_u32 s{sF}, s{sF}, {R1}")
        a("v_and_b32 v8, 31, v1\nv_lshlrev_b32 v8, 2, v8")
        self.flag_poll(FL3, sW, 8)
        self.stamp()
        vm = []

        def wait(*tags):
            last = max(i for i, t in enumerate(vm) if t in tags)
            a(f"s_waitcnt vmcnt({len(vm) - 1 - last})")

        def hl(kk, rt):
            if kk % 2 == 0 and rt == 0:
                a(f"s_add_u32 s{sE}, s{sXG}, {kk // 2}\ns_and_b32 s{sE}, s{sE}, 7\ns_lshl_b32 s{sE}, s{sE}, 10\ns_add_u32 s{sE}, s{sE}, s{sF}")
            a(f"buffer_load_dwordx4 {vr(HB + (kk % DEPTH) * 8 + rt * 4, 4)}, v{46 + rt}, {srd(rWS)}, s{sE} offen offset:{512 * (kk & 1)} sc1")
            vm.append(("h", kk))

        def wr(n):
            kk, t = divmod(n, 8)
            ad = (10, 40)[t & 1] + (t >> 1)
            return [f"ds_read_b64_tr_b16 {vr(WF + (n % SLOTS) * 4 + 2 * u, 2)}, v{ad} offset:{kk * 4096 + u * 512}" for u in range(2)]

        todo = [(kk, rt) for kk in range(16) for rt in range(2)]
        for _ in range(2 * D0):
            hl(*todo.pop(0))
        for n in range(AHEAD):
            for x in wr(n):
                a(x)
        eb, step = self.nb, self.o["w_step"]
        wk = self.o["wk_lines"]
        a(f"s_lshl_b32 s{sA}, s{sJ}, 3\ns_add_u32 s{sA}, s{sA}, s{sW}\ns_mul_i32 s{sA}, s{sA}, {wk}\ns_add_u32 s{sA}, s{sA}, {self.sp_end}")
        a(f"v_min_u32 v45, {max(wk - 1, 0)}, v1\nv_add_lshl_u32 v45, v45, s{sA}, 7")
        nb, vis = eb, eb
        for kk in range(16):
            if kk % 2 == 1 and (kk + 1) // 2 < 8 and (kk + 1) // 2 >= vis:
                first = (kk + 1) // 2
                hpos = max(i for i, t in enumerate(vm) if t == ("h", kk))
                while vis < nb and (vis == first or max(i for i, t in enumerate(vm) if t == ("w", vis)) < hpos):
                    vis += 1
                assert vis > first
                wait(("h", kk), ("w", vis - 1))
                a("s_barrier")
            else:
                wait(("h", kk))
                if kk == 1 and eb == 8:
                    a("s_barrier")
            for t in range(8):
                n = kk * 8 + t
                left = min(128, n + AHEAD) - n - 1
                a(f"s_waitcnt lgkmcnt({2 * left})")
                for rt in range(2):
                    acc = vr(ACC + (rt * 8 + t) * 4, 4)
                    c = "0" if kk == 0 else acc
                    a(f"v_mfma_f32_16x16x32_bf16 {acc}, {vr(WF + (n % SLOTS) * 4, 4)}, {vr(HB + (kk % DEPTH) * 8 + rt * 4, 4)}, {c}")
                    if n + AHEAD < 128:
                        a(wr(n + AHEAD)[rt])
                if t in (0, 2, 4, 6) and todo and todo[0][0] < kk + DEPTH:
                    hl(*todo.pop(0))
                if t == 3 and nb < 8 and kk >= int((nb - eb) * step):
                    self.w1_block(nb)
                    vm.extend([("w", nb)] * 2)
                    nb += 1
                if t == 5 and wk and kk == self.o["wk_at"]:
                    a(f"global_load_dword v44, v45, {sp(sWD)}")
                    vm.append("d")
        assert nb == 8 and not todo
        self.stamp()
        a("s_waitcnt vmcnt(0)\ns_barrier")
        dma = self.wd_dma()
        n0 = len(a.lines)
        a(f"v_mov_b32 v44, {f2h(C1 / ALPHA)}\nv_lshlrev_b32 v46, 4, v1")
        a(f"s_mul_i32 s{sA}, s{sW}, {2 * 57344}\ns_lshl_b32 s{sB}, s{sJ}, 11\ns_add_u32 s{sA}, s{sA}, s{sB}")
        a(f"s_mul_i32 s{sB}, s{sXG}, {ZG}\ns_add_u32 s{sA}, s{sA}, s{sB}\ns_add_u32 s{sE}, s{sA}, {Z}\ns_add_u32 s{sF}, s{sE}, 57344")
        for rt in range(2):
            base = ACC + rt * 32
            pairs = [(base + 8 * tt + 2 * h, base + 8 * tt + 4 + 2 * h) for tt in range(4) for h in range(2)]
            T, O = 48, 64 + 8 * rt
            for d, (g, u) in enumerate(pairs):
                a(f"v_pk_fma_f32 {vr(T + 2 * d, 2)}, {vr(g, 2)}, {vr(g, 2)}, v[44:45] op_sel_hi:[1,1,0]")
            for d, (g, u) in enumerate(pairs):
                a(f"v_pk_mul_f32 {vr(T + 2 * d, 2)}, {vr(T + 2 * d, 2)}, {vr(g, 2)} neg_lo:[0,1] neg_hi:[0,1]")
            for d, (g, u) in enumerate(pairs):
                a(f"v_exp_f32 v{T + 2 * d}, v{T + 2 * d}\nv_exp_f32 v{T + 2 * d + 1}, v{T + 2 * d + 1}")
            for d, (g, u) in enumerate(pairs):
                a(f"v_pk_mul_f32 {vr(u, 2)}, {vr(u, 2)}, {vr(g, 2)}")
            for d, (g, u) in enumerate(pairs):
                a(f"v_pk_add_f32 {vr(T + 2 * d, 2)}, {vr(T + 2 * d, 2)}, 1.0 op_sel_hi:[1,0]")
            for d, (g, u) in enumerate(pairs):
                a(f"v_rcp_f32 v{T + 2 * d}, v{T + 2 * d}\nv_rcp_f32 v{T + 2 * d + 1}, v{T + 2 * d + 1}")
            for d, (g, u) in enumerate(pairs):
                a(f"v_pk_mul_f32 {vr(u, 2)}, {vr(u, 2)}, {vr(T + 2 * d, 2)}")
            for d, (g, u) in enumerate(pairs):
                a(f"v_cvt_pk_bf16_f32 v{O + d}, v{u}, v{u + 1}")
            so_ = (sE, sF)[rt]
            self.local_stores([f"buffer_store_dwordx4 {vr(O, 4)}, v46, {srd(rWS)}, s{so_} offen",
                               f"buffer_store_dwordx4 {vr(O + 4, 4)}, v46, {srd(rWS)}, s{so_} offen offset:1024"])
        body, out, gap = a.lines[n0:], [], self.o["dma_gap"]
        cnt = gap
        for ln in body:
            if dma and ln.startswith("v_"):
                if cnt >= gap:
                    out += dma.pop(0).split("\n")
                    cnt = 0
                cnt += 1
            out.append(ln)
        assert not dma
        a.lines[n0:] = out
        self.stamp()
        self.flag_store(FL4, sW, sJ)
        a(f"{lg2}:")

    WD = 144

    def wd_dma(self):
        a = self.a
        self.mk_srd(rD, sWD, 1792 * 1024)
        a("v_lshrrev_b32 v9, 3, v1\nv_lshrrev_b32 v10, 4, v1\nv_lshlrev_b32 v10, 1, v10\nv_and_b32 v8, 7, v1\nv_xor_b32 v10, v10, v8")
        a("v_lshlrev_b32 v9, 10, v9\nv_lshl_add_u32 v14, v10, 4, v9")
        a(f"s_and_b32 s{sA}, s{sJ}, 1\ns_lshl_b32 s{sA}, s{sA}, 3\ns_add_u32 s{sA}, s{sA}, s{sW}\ns_mul_i32 s{sA}, s{sA}, {112 * 1024}")
        a(f"s_bfe_u32 s{sB}, s{sJ}, 0x30001\ns_lshl_b32 s{sB}, s{sB}, 7\ns_add_u32 s{sWO}, s{sA}, s{sB}\ns_mul_i32 s{sWP}, s{sW}, 14336")
        return [f"s_add_u32 m0, s{sWP}, {1024 * i}\ns_add_u32 s{sGt}, s{sWO}, {8192 * i}\nbuffer_load_dwordx4 v14, {srd(rD)}, s{sGt} offen lds" for i in range(14)]

    def wd_setup(self):
        a = self.a
        a(f"s_and_b32 s{sA}, s{sW}, 3\ns_mul_i32 s{sA}, s{sA}, 28672\nv_lshrrev_b32 v9, 2, v1\nv_bfe_u32 v8, v1, 3, 2\nv_lshlrev_b32 v9, 7, v9")
        a(f"v_lshl_add_u32 v9, v8, 5, v9\nv_and_b32 v8, 3, v1\nv_lshl_add_u32 v9, v8, 3, v9\nv_add_u32 v62, s{sA}, v9")
        for nt in range(1, 4):
            a(f"v_xor_b32 v{62 + nt}, {32 * nt}, v62")

    def wd_read(self):
        for f in range(7):
            for nt in range(4):
                for u in range(2):
                    self.a(f"ds_read_b64_tr_b16 {vr(self.WD + (f * 4 + nt) * 4 + 2 * u, 2)}, v{62 + nt} offset:{(32 * f + 16 * u) * 128}")

    def gemm2(self):
        a = self.a
        HB, ACC, GB, RD, XU = 16, 72, 104, 112, 48
        RING, R0 = self.o["ring"], self.o["r0"]
        assert RING <= 8
        self.wd_setup()
        a("s_barrier")
        self.wd_read()
        sQ4, sRO, sOWN = sKW, sWP, sWO
        a(f"s_and_b32 s{sQ4}, s{sW}, 3\ns_and_b32 s{sA}, s{sW}, 4\ns_lshr_b32 s{sB}, s{sJ}, 4\ns_lshl_b32 s{sB}, s{sB}, 1\ns_add_u32 s{sF}, s{sA}, s{sB}")
        a(f"s_and_b32 s{sA}, s{sJ}, 1\ns_add_u32 s{sRO}, s{sF}, s{sA}\ns_lshl_b32 s{sA}, s{sA}, 2\ns_add_u32 s{sA}, s{sA}, s{sQ4}\ns_mul_i32 s{sE}, s{sA}, 7")
        a(f"s_lshr_b32 s{sA}, s{sE}, 1\nv_and_b32 v8, 3, v1\nv_add_u32 v8, s{sA}, v8\nv_bfe_u32 v9, v1, 2, 1\nv_lshlrev_b32 v8, 2, v8\nv_lshl_add_u32 v8, v9, 7, v8")
        a(f"s_mul_i32 s{sB}, s{sXG}, {ZG}\ns_lshl_b32 s{sE}, s{sE}, 10\ns_add_u32 s{sE}, s{sE}, s{sB}\ns_add_u32 s{sE}, s{sE}, {Z}")
        a(f"s_mul_i32 s{sA}, s{sRO}, {2 * 57344}\ns_add_u32 s{sOWN}, s{sE}, s{sA}\ns_xor_b32 s{sA}, s{sRO}, 1\ns_mul_i32 s{sA}, s{sA}, {2 * 57344}\ns_add_u32 s{sGt}, s{sE}, s{sA}")
        a("v_lshlrev_b32 v6, 4, v1\nv_add_u32 v7, 4096, v6")
        vm = []

        def load(n):
            i, f = divmod(n, 7)
            if f == 0:
                a(f"s_add_u32 s{sE}, s{(sGt, sOWN)[i >> 1]}, {(i & 1) * 57344}")
            a(f"buffer_load_dwordx4 {vr(HB + (n % RING) * 4, 4)}, v{6 + (f >> 2)}, {srd(rWS)}, s{sE} offen offset:{1024 * (f & 3)} sc1")
            vm.append(n)

        def wait(tag):
            a(f"s_waitcnt vmcnt({len(vm) - 1 - vm.index(tag)})")

        def dump(i, nt):
            a(f"ds_write_b128 v{12 + (nt & 1)}, {vr(ACC + ((i & 1) * 4 + nt) * 4, 4)} offset:{(i >> 1) * 8192 + (i & 1) * 4096 + nt * 1024}")

        def finalise(ph, xtag):
            for q in range(4):
                for h in range(2):
                    a(f"ds_read_b128 {vr(RD + 8 * q + 4 * h, 4)}, v14 offset:{q * 16384 + ph * 8192 + 256 * h}")
            wait(xtag)
            self.unpack8(XU, 2)
            for q in range(1, 4):
                a(f"s_waitcnt lgkmcnt({2 * (3 - q)})")
                for e in range(8):
                    a(f"v_add_f32 v{RD + e}, v{RD + e}, v{RD + 8 * q + e}")
            for e in range(8):
                a(f"v_fmac_f32 v{XU + e}, v{RD + e}, v{GB + e}")
            for e in range(4):
                a(f"v_cvt_pk_bf16_f32 v{56 + e}, v{XU + 2 * e}, v{XU + 2 * e + 1}")

        self.flag_poll(FL4, sF, 8)
        self.stamp()
        for n in range(R0):
            load(n)
        nxt = R0
        a("v_lshrrev_b32 v12, 5, v1\nv_lshl_add_u32 v12, v12, 2, v1\nv_and_b32 v12, 15, v12\nv_and_b32 v13, 48, v1\nv_or_b32 v12, v12, v13")
        a(f"s_lshl_b32 s{sA}, s{sW}, 14\nv_lshl_add_u32 v12, v12, 4, s{sA}\nv_xor_b32 v13, 128, v12")
        a(f"v_lshrrev_b32 v10, 3, v1\nv_and_b32 v11, 7, v1\ns_and_b32 s{sA}, s{sW}, 1\ns_lshl_b32 s{sA}, s{sA}, 3\nv_and_b32 v14, 3, v1\nv_lshl_add_u32 v14, v14, 2, v10")
        a(f"v_add_u32 v14, s{sA}, v14\nv_and_b32 v14, 15, v14\nv_lshl_add_u32 v14, v11, 5, v14")
        a(f"s_and_b32 s{sA}, s{sW}, 4\ns_lshl_b32 s{sA}, s{sA}, 14\ns_and_b32 s{sB}, s{sW}, 2\ns_lshl_b32 s{sB}, s{sB}, 11\ns_add_u32 s{sA}, s{sA}, s{sB}\nv_lshl_add_u32 v14, v14, 4, s{sA}")
        a(f"s_lshl_b32 s{sA}, s{sXG}, 3\ns_add_u32 s{sA}, s{sA}, s{sRO}\ns_lshl_b32 s{sA}, s{sA}, 2\ns_add_u32 s{sA}, s{sA}, s{sQ4}\ns_lshl_b32 s{sA}, s{sA}, 13")
        a(f"s_bfe_u32 s{sB}, s{sJ}, 0x30001\ns_lshl_b32 s{sB}, s{sB}, 7\ns_add_u32 s{sA}, s{sA}, s{sB}")
        a(f"v_lshlrev_b32 v15, 10, v10\nv_lshl_add_u32 v15, v11, 4, v15\nv_add_u32 v15, s{sA}, v15\nv_xor_b32 v10, 0x8000, v15")
        a(f"s_add_u32 s{sB}, s{sB}, {L_MOD + 5 * 1024}\nv_lshl_add_u32 v9, v11, 4, s{sB}\nds_read_b128 v[56:59], v9")
        a(f"s_lshl_b32 s{sA}, s{sXG}, 3\ns_add_u32 s{sA}, s{sA}, s{sW}\ns_lshl_b32 s{sA}, s{sA}, 7\ns_add_u32 s{sF}, s{sA}, {FL5}")
        a(f"s_lshl_b32 s{sA}, s{sJ}, 2\nv_mov_b32 v60, s{sA}\nv_xor_b32 v8, 4, v60\nv_mov_b32 v61, s{sT}\ns_waitcnt lgkmcnt(0)")
        self.unpack8(GB, 56)
        for e in range(8):
            a(f"v_mul_f32 v{GB + e}, {f2h(ALPHA ** -2)}, v{GB + e}")
        NF, NS = self.o["fin_at"], None
        for n in range(28):
            i, f = divmod(n, 7)
            wait(n)
            if NS is not None and "flag" not in vm and vm.index(n) > NS:
                a("s_mov_b64 exec, 1")
                self.local_stores([f"buffer_store_dword v61, v60, {srd(rWS)}, s{sF} offen"])
                a("s_mov_b64 exec, -1")
                vm.append("flag")
            for nt in range(4):
                acc = vr(ACC + ((i & 1) * 4 + nt) * 4, 4)
                c = "0" if f == 0 else acc
                a(f"v_mfma_f32_16x16x32_bf16 {acc}, {vr(self.WD + (f * 4 + nt) * 4, 4)}, {vr(HB + (n % RING) * 4, 4)}, {c}")
                if nt in (0, 2) and nxt < 28 and nxt < n + RING:
                    load(nxt)
                    nxt += 1
                if i >= 1 and f in (1, 2) and nt in (1, 3):
                    dump(i - 1, 2 * (f - 1) + (nt >> 1))
            if n == 6:
                a("s_barrier")
            if n == 8:
                a(f"global_load_dwordx4 v[2:5], v10, {sp(sOUT)} sc1")
                vm.append("x1")
            if n == NF:
                a("s_waitcnt lgkmcnt(0)\ns_barrier")
                finalise(0, "x1")
                self.local_stores([f"global_store_dwordx4 v10, v[56:59], {sp(sOUT)}"])
                vm.append("t")
                NS = len(vm) - 1
            elif f == 5:
                a("s_waitcnt lgkmcnt(0)")
        assert "flag" in vm
        self.stamp()
        for nt in range(4):
            dump(3, nt)
        self.flag_poll(FL5, sW, 8)
        a(f"global_load_dwordx4 v[2:5], v15, {sp(sOUT)} sc1")
        vm.append("x2")
        a("s_waitcnt lgkmcnt(0)\ns_barrier")
        finalise(1, "x2")
        a(f"global_store_dwordx4 v15, v[56:59], {sp(sOUT)}" + (" sc1" if self.o["out_sc1"] else ""))
        if self.stamps:
            a("s_waitcnt vmcnt(0)")
        self.stamp()

    def build(self):
        a = self.a
        done = False
        for name, fn in (("p0", self.phase0), ("conv", self.conv), ("p2", self.p2), ("g1", self.gemm1), ("g2", self.gemm2)):
            fn()
            if self.maybe_stop(name):
                done = True
                break
        if not done:
            self.end()
        a("L_exit:\nL_last:\ns_endpgm")
        ref = open(f"cdna_kernels/{NAME}.s.ref").read().split("\n")
        head = [ln for ln in ref if ln.startswith(";") and "@launch" not in ln and "Override" not in ln and "grid=ceil" not in ln]
        txt = "\n".join(head) + f"\n; @launch grid=(256,1,1) block=(512,1,1) lds={LDS_BYTES}\n"
        txt += f'.amdgcn_target "amdgcn-amd-amdhsa--gfx950"\n.text\n.globl {NAME}_kernel\n.p2align 8\n.type {NAME}_kernel,@function\n{NAME}_kernel:\n'
        txt += a.finish()
        txt += f""".section .rodata,"a"
.p2align 6
.amdhsa_kernel {NAME}_kernel
  .amdhsa_next_free_vgpr 256
  .amdhsa_next_free_sgpr 102
  .amdhsa_accum_offset 256
  .amdhsa_group_segment_fixed_size 0
  .amdhsa_kernarg_size 120
  .amdhsa_user_sgpr_count 2
  .amdhsa_user_sgpr_kernarg_segment_ptr 1
  .amdhsa_system_sgpr_workgroup_id_x 1
  .amdhsa_float_denorm_mode_32 3
.end_amdhsa_kernel
"""
        return txt


if __name__ == "__main__":
    import argparse
    ap = argparse.ArgumentParser()
    ap.add_argument("out")
    ap.add_argument("--stop")
    ap.add_argument("--stamps", action="store_true")
    ap.add_argument("--slow", action="store_true")
    ap.add_argument("--opt", default="")
    o = ap.parse_args()
    opt = eval(f"dict({o.opt})")
    open(o.out, "w").write(Gen(o.stop, o.stamps, o.slow, **opt).build())
```

```python
import struct
import sys
from asmlib import Asm

NAME = "adaLN_cond__ssm_conv_h3__glu_gated_geglu__prompt"

FL1, FL3, FL4, FL5 = 0x4000, 0x6000, 0x8000, 0xA000
MODF = 0x2000
MODP = 0x10000
R1 = 0x100000
Z = 0x300000
ZG = 0xE0000
STAMP = 0xA00000
WS_BYTES = 0x1000000

L_G = 0
L_U = 65536
L_KT = 0
L_VT = 9 * 1040
L_KVR = 114688
L_PART = 131072
L_MOD = 131072 + 8448
LDS_BYTES = 163840
KCH = 8320
KE, KO = 32, 32 + 4096 + 64
SPIN = 1 << 16
C1 = 1.5957691216057308 * 1.4426950408889634
ALPHA = (C1 * 0.044715) ** (1.0 / 3.0)


def f2h(x):
    return "0x%08x" % struct.unpack("<I", struct.pack("<f", x))[0]


sQ, sK, sV, sSH, sSK, sSD, sWG, sWU, sWD, sC, sWM, sOUT, sDBG, sWS = (
    4, 6, 8, 10, 12, 14, 18, 20, 22, 24, 26, 28, 30, 32)
sXG, sJ, sW, sP, sT, sFAST, sID = 34, 35, 36, 37, 38, 40, 41
sDA, sDB = 42, 43
rK, rV, rG, rU, rD, rWS, rSK = 44, 48, 52, 56, 60, 64, 68
sA, sB, sCn, sE, sF, sGt = 72, 73, 74, 75, 76, 77
sM = 78
sWP, sWO = 100, 101
sKW = 3
sST = 80


def sp(n):
    return f"s[{n}:{n + 1}]"


def srd(n):
    return f"s[{n}:{n + 3}]"


def vr(n, k):
    return f"v[{n}:{n + k - 1}]"


DEFAULTS = dict(nb1=2, nb2=1, nb3=1, sp_lines=8, wk_lines=32, wk_at=8, w_step=2, dma_gap=12, wb_at=-1, nt_from=8, nt0=' nt', out_sc1=0, depth=4, d0=1, ring=5, r0=3, fin_at=16, spare=('d', 'z', 'y', 'o'))


class Gen:
    def __init__(self, stop=None, stamps=False, force_slow=False, **opt):
        self.o = dict(DEFAULTS)
        self.o.update(opt)
        self.a = Asm()
        self.stop = stop
        self.stamps = stamps
        self.force_slow = force_slow
        self.nst = 0
        self.nb = 0
        self.wd_done = 0

    def stamp(self):
        if not self.stamps:
            return
        a = self.a
        a(f"s_memrealtime {sp(sM)}")
        a("s_waitcnt lgkmcnt(0)")
        a(f"s_mov_b32 s{sST + self.nst}, s{sM}")
        self.nst += 1

    def mk_srd(self, r, p, nbytes):
        self.a(f"s_mov_b64 {sp(r)}, {sp(p)}\ns_mov_b32 s{r + 2}, {nbytes}\ns_mov_b32 s{r + 3}, 0x20000")

    def local_stores(self, lines):
        a = self.a
        ls, le = a.label("slow"), a.label("join")
        a(f"s_cmp_eq_u32 s{sFAST}, 0\ns_cbranch_scc1 {ls}")
        for ln in lines:
            a(ln)
        a(f"s_branch {le}\n{ls}:")
        for ln in lines:
            a(ln + " sc1")
        a(f"{le}:")

    def flag_store(self, fl, sline, sword):
        a = self.a
        a(f"s_lshl_b32 s{sA}, s{sXG}, 3\ns_add_u32 s{sA}, s{sA}, s{sline}\ns_lshl_b32 s{sA}, s{sA}, 5\ns_add_u32 s{sA}, s{sA}, s{sword}")
        a(f"s_lshl_b32 s{sA}, s{sA}, 2\ns_add_u32 s{sA}, s{sA}, {fl}\nv_mov_b32 v8, 0\nv_mov_b32 v9, s{sT}")
        a("s_waitcnt vmcnt(0)\ns_mov_b64 exec, 1")
        self.local_stores([f"buffer_store_dword v9, v8, {srd(rWS)}, s{sA} offen"])
        a("s_mov_b64 exec, -1")

    def flag_poll(self, fl, sline, voff):
        a = self.a
        lp, ld = a.label("poll"), a.label("seen")
        a(f"s_lshl_b32 s{sA}, s{sXG}, 3\ns_add_u32 s{sA}, s{sA}, s{sline}\ns_lshl_b32 s{sA}, s{sA}, 7\ns_add_u32 s{sA}, s{sA}, {fl}")
        a(f"s_mov_b32 s{sCn}, 0\n{lp}:")
        a(f"buffer_load_dword v9, v{voff}, {srd(rWS)}, s{sA} offen sc1\ns_add_u32 s{sCn}, s{sCn}, 1\ns_waitcnt vmcnt(0)")
        a(f"v_cmp_ne_u32 vcc, s{sT}, v9\ns_cbranch_vccz {ld}")
        a(f"s_cmp_lt_u32 s{sCn}, {SPIN}\ns_cbranch_scc1 {lp}\n{ld}:")

    def tagged_loads(self, loads, behind=None):
        a = self.a
        lp, ld, lc = a.label("tag"), a.label("tagok"), a.label("tagchk")
        if behind:
            for ins, _, _ in loads:
                a(ins)
            n = behind()
            a(f"s_mov_b32 s{sCn}, 0\ns_waitcnt vmcnt({n})\ns_branch {lc}")
        else:
            a(f"s_mov_b32 s{sCn}, 0")
        a(f"{lp}:")
        for ins, _, _ in loads:
            a(ins)
        a(f"s_add_u32 s{sCn}, s{sCn}, 1\ns_waitcnt vmcnt(0)\n{lc}:")
        for i, (_, tg, wide) in enumerate(loads):
            dst = "vcc" if i == 0 else sp(sM)
            if wide:
                a(f"v_cmp_ne_u64 {dst}, {sp(sT)}, {tg}")
            else:
                a(f"v_cmp_ne_u32 {dst}, s{sT}, {tg}")
            if i:
                a(f"s_or_b64 vcc, vcc, {sp(sM)}")
        a(f"s_cmp_eq_u64 vcc, 0\ns_cbranch_scc1 {ld}")
        a(f"s_sleep 2\ns_cmp_lt_u32 s{sCn}, {SPIN}\ns_cbranch_scc1 {lp}\n{ld}:")

    def wave_sum(self, regs, tmp):
        a = self.a
        for sh in (8, 4, 2, 1):
            for r in regs:
                a(f"v_add_f32_dpp v{r}, v{r}, v{r} row_ror:{sh} row_mask:0xf bank_mask:0xf")
        for op in ("v_permlane16_swap_b32", "v_permlane32_swap_b32"):
            for i, r in enumerate(regs):
                a(f"v_mov_b32 v{tmp + i}, v{r}")
            for i, r in enumerate(regs):
                a(f"{op} v{r}, v{tmp + i}")
            for i, r in enumerate(regs):
                a(f"v_add_f32 v{r}, v{r}, v{tmp + i}")

    def unpack8(self, dst, src):
        for i in range(4):
            self.a(f"v_lshlrev_b32 v{dst + 2 * i}, 16, v{src + i}\nv_and_b32 v{dst + 2 * i + 1}, 0xffff0000, v{src + i}")

    def ln_stats(self, x, mu, rs, tmp):
        a = self.a
        a(f"v_pk_add_f32 {vr(tmp, 2)}, {vr(x, 2)}, {vr(x + 2, 2)}")
        a(f"v_pk_mul_f32 {vr(tmp + 2, 2)}, {vr(x, 2)}, {vr(x, 2)}")
        a(f"v_pk_add_f32 {vr(tmp, 2)}, {vr(tmp, 2)}, {vr(x + 4, 2)}")
        a(f"v_pk_fma_f32 {vr(tmp + 2, 2)}, {vr(x + 2, 2)}, {vr(x + 2, 2)}, {vr(tmp + 2, 2)}")
        a(f"v_pk_add_f32 {vr(tmp, 2)}, {vr(tmp, 2)}, {vr(x + 6, 2)}")
        a(f"v_pk_fma_f32 {vr(tmp + 2, 2)}, {vr(x + 4, 2)}, {vr(x + 4, 2)}, {vr(tmp + 2, 2)}")
        a(f"v_add_f32 v{mu}, v{tmp}, v{tmp + 1}")
        a(f"v_pk_fma_f32 {vr(tmp + 2, 2)}, {vr(x + 6, 2)}, {vr(x + 6, 2)}, {vr(tmp + 2, 2)}")
        a(f"v_add_f32 v{rs}, v{tmp + 2}, v{tmp + 3}")
        self.wave_sum([mu, rs], tmp)
        a(f"v_mul_f32 v{mu}, 0x3b000000, v{mu}")
        a(f"v_mul_f32 v{rs}, 0x3b000000, v{rs}")
        a(f"v_fma_f32 v{rs}, -v{mu}, v{mu}, v{rs}")
        a(f"v_max_f32 v{rs}, 0, v{rs}")
        a(f"v_add_f32 v{rs}, 0x3727c5ac, v{rs}")
        a(f"v_rsq_f32 v{rs}, v{rs}")

    def w1_setup(self):
        a = self.a
        self.mk_srd(rG, sWG, 512 * 3584)
        self.mk_srd(rU, sWU, 512 * 3584)
        a(f"s_lshl_b32 s{sWP}, s{sW}, 10\ns_and_b32 s{sA}, s{sW}, 1\ns_lshl_b32 s{sA}, s{sA}, 2\nv_bfe_u32 v8, v1, 4, 1\nv_lshl_add_u32 v8, v8, 1, s{sA}")
        a(f"v_and_b32 v9, 7, v1\nv_xor_b32 v8, v8, v9\nv_lshrrev_b32 v9, 3, v1\nv_mul_u32_u24 v9, 3584, v9\nv_lshl_add_u32 v14, v8, 4, v9")
        a(f"s_lshl_b32 s{sB}, s{sJ}, 7\ns_mul_i32 s{sA}, s{sW}, {8 * 3584}\ns_add_u32 s{sB}, s{sB}, s{sA}\nv_add_u32 v14, s{sB}, v14")

    def w1_block(self, b, both=False):
        a = self.a
        a(f"s_add_u32 s{sWO}, s{sXG}, {b}\ns_and_b32 s{sWO}, s{sWO}, 7\ns_mul_i32 s{sWO}, s{sWO}, {64 * 3584}")
        for r, lds in ((rG, L_G), (rU, L_U)):
            if both:
                a(f"s_add_u32 m0, s{sWP}, {(lds + b * 8192 - 4096) & 0xffffffff}")
                a(f"buffer_load_dwordx4 v13, {srd(r)}, s{sWO} offen{' nt' if b >= self.o['nt_from'] else ''} lds")
            a(f"s_add_u32 m0, s{sWP}, {lds + b * 8192}")
            a(f"buffer_load_dwordx4 v14, {srd(r)}, s{sWO} offen{' nt' if b >= self.o['nt_from'] else ''} lds")

    def w1_blocks(self, n, both=False):
        a = self.a
        if n == 0:
            return 0
        ls, le = a.label("sp"), a.label("spe")
        a(f"s_cmp_ge_u32 s{sJ}, 28\ns_cbranch_scc1 {ls}")
        for b in range(self.nb, self.nb + n):
            self.w1_block(b, both)
        a(f"s_branch {le}\n{ls}:")
        cnt = n * (4 if both else 2)
        per = self.o["sp_lines"]
        a(f"v_min_u32 v8, {per - 1}, v1\ns_sub_u32 s{sA}, s{sJ}, 28\ns_mul_i32 s{sA}, s{sA}, {16 * per * n}\ns_and_b32 s{sB}, s{sW}, {3 if both else 7}")
        a(f"s_mul_i32 s{sB}, s{sB}, {per * cnt}\ns_add_u32 s{sA}, s{sA}, s{sB}\ns_add_u32 s{sA}, s{sA}, {self.wd_done}\nv_add_lshl_u32 v8, v8, s{sA}, 7")
        for i in range(cnt):
            a(f"global_load_dword v143, v8, {sp(sWD)}")
            if i < cnt - 1:
                a(f"v_add_u32 v8, {128 * per}, v8")
        a(f"{le}:")
        self.nb += n
        self.wd_done += 64 * per * n
        assert self.wd_done <= 14336
        return cnt

    def end(self):
        a = self.a
        if self.stamps:
            l = a.label("nost")
            a(f"s_and_b32 s{sA}, s{sW}, 3\ns_cmp_lg_u32 s{sA}, 0\ns_cbranch_scc1 {l}")
            a(f"s_lshl_b32 s{sA}, s2, 1\ns_lshr_b32 s{sB}, s{sW}, 2\ns_add_u32 s{sA}, s{sA}, s{sB}\ns_lshl_b32 s{sA}, s{sA}, 7\ns_add_u32 s{sA}, s{sA}, {STAMP}")
            a("v_mov_b32 v8, 0\ns_mov_b64 exec, 1")
            for i in range(self.nst):
                a(f"v_mov_b32 v9, s{sST + i}\nbuffer_store_dword v9, v8, {srd(rWS)}, s{sA} offen offset:{4 * i}")
            a(f"v_mov_b32 v9, s{sFAST}\nbuffer_store_dword v9, v8, {srd(rWS)}, s{sA} offen offset:124")
            a(f"{l}:")
        a("s_endpgm")

    def maybe_stop(self, name):
        if self.stop == name:
            self.a("s_waitcnt vmcnt(0) lgkmcnt(0)")
            self.bump_epoch()
            self.end()
            return True
        return False

    def bump_epoch(self):
        a = self.a
        l = a.label("noep")
        a(f"s_or_b32 s{sA}, s2, s{sW}\ns_cmp_lg_u32 s{sA}, 0\ns_cbranch_scc1 {l}")
        a(f"v_mov_b32 v8, 0\nv_mov_b32 v9, s{sT}\ns_mov_b64 exec, 1")
        a(f"buffer_store_dword v9, v8, {srd(rWS)}, 0 offen sc1\ns_mov_b64 exec, -1\n{l}:")

    def phase0(self):
        a = self.a
        a("s_load_dwordx16 s[4:19], s[0:1], 0\ns_load_dwordx8 s[20:27], s[0:1], 64")
        a("s_load_dwordx4 s[28:31], s[0:1], 96\ns_load_dwordx2 s[32:33], s[0:1], 112")
        a("s_cmp_ge_u32 s2, 256\ns_cbranch_scc1 L_exit")
        a("v_lshrrev_b32 v8, 6, v0\nv_and_b32 v1, 63, v0")
        a(f"s_and_b32 s{sXG}, s2, 7\ns_lshr_b32 s{sJ}, s2, 3\nv_readfirstlane_b32 s{sW}, v8")
        a(f"s_lshl_b32 s{sP}, s{sXG}, 5\ns_add_u32 s{sP}, s{sP}, s{sJ}")
        a(f"s_getreg_b32 s{sID}, hwreg(HW_REG_XCC_ID, 0, 4)\ns_add_u32 s{sID}, s{sID}, 1")
        a("v_lshrrev_b32 v10, 3, v1\nv_and_b32 v11, 7, v1\nv_lshlrev_b32 v12, 10, v10\nv_lshl_add_u32 v12, v11, 4, v12")
        a(f"s_lshl_b32 s{sE}, s{sJ}, 3\ns_add_u32 s{sE}, s{sE}, s{sW}\ns_lshl_b32 s{sE}, s{sE}, 13\ns_lshl_b32 s{sA}, s{sXG}, 7\ns_add_u32 s{sE}, s{sE}, s{sA}")
        a(f"s_mul_i32 s{sF}, s{sW}, 1040")
        a("s_waitcnt lgkmcnt(0)")
        self.stamp()
        self.mk_srd(rK, sK, 2097152)
        self.mk_srd(rV, sV, 2097152)
        a(f"s_add_u32 m0, s{sF}, {L_KT + 1040}\nbuffer_load_dwordx4 v12, {srd(rK)}, s{sE} offen{self.o['nt0']} lds")
        a(f"s_add_u32 m0, s{sF}, {L_VT}\nbuffer_load_dwordx4 v12, {srd(rV)}, s{sE} offen{self.o['nt0']} lds")
        a(f"s_load_dword s{sT}, {sp(sWS)}, 0")
        a(f"s_lshl_b32 s{sA}, s{sP}, 2\ns_load_dword s{sDA}, {sp(sSD)}, s{sA}")
        l0 = a.label("nw0")
        a(f"s_cmp_lg_u32 s{sW}, 0\ns_cbranch_scc1 {l0}")
        a(f"s_sub_u32 s{sA}, s{sE}, 8192\nv_add_u32 v13, s{sA}, v12\ns_mov_b32 m0, {L_KT}")
        a(f"v_mov_b32 v8, s{sP}\nv_mov_b32 v9, s{sID}")
        a(f"s_mov_b32 exec_lo, 0\ns_mov_b32 exec_hi, 0xffffff00\nbuffer_load_dwordx4 v13, {srd(rK)}, 0 offen lds")
        a(f"s_mov_b64 exec, 1\nglobal_store_byte v8, v9, {sp(sDBG)}\ns_mov_b64 exec, -1\n{l0}:")
        self.mk_srd(rSK, sSK, 2097152)
        self.mk_srd(rWS, sWS, WS_BYTES)
        a(f"s_lshl_b32 s{sA}, s{sXG}, 3\ns_add_u32 s{sA}, s{sA}, s{sW}\ns_lshl_b32 s{sA}, s{sA}, 6\nv_lshl_add_u32 v13, v10, 3, s{sA}")
        a(f"s_lshl_b32 s{sA}, s{sXG}, 5\nv_and_b32 v14, 31, v1\nv_add_u32 v14, s{sA}, v14")
        a(f"s_lshl_b32 s{sA}, s{sP}, 13\nv_lshl_add_u32 v22, v0, 4, s{sA}\nv_add_u32 v23, -4, v22")
        a(f"s_lshl_b32 s{sA}, s{sP}, 3\ns_add_u32 s{sA}, s{sA}, s{sW}\ns_lshl_b32 s{sA}, s{sA}, 10\nv_lshl_add_u32 v15, v1, 4, s{sA}")
        a("s_barrier")
        a(f"global_load_dwordx2 v[30:31], v13, {sp(sSH)}")
        a(f"buffer_load_dwordx4 v[16:19], v22, {srd(rSK)}, 0 offen\nbuffer_load_dword v20, v23, {srd(rSK)}, 0 offen")
        lm, lj = a.label("wm"), a.label("wj")
        a(f"s_cmp_ge_u32 s{sW}, 2\ns_cbranch_scc1 {lm}")
        a(f"s_getpc_b64 {sp(sM)}\nL_pc:\ns_lshl_b32 s{sA}, s{sJ}, 7\nv_lshl_add_u32 v13, v11, 12, s{sA}\nv_min_u32 v13, L_last-L_pc, v13\nglobal_load_dword v82, v13, {sp(sM)}")
        a(f"s_lshl_b32 s{sA}, s{sP}, 13\ns_add_u32 s{sA}, s{sA}, {R1}\ns_mul_i32 s{sB}, s{sP}, 3072\ns_add_u32 s{sB}, s{sB}, {MODP}")
        a(f"s_cmp_eq_u32 s{sW}, 0\ns_cselect_b32 s{sA}, s{sA}, s{sB}\ns_cselect_b32 s{sB}, 63, 23\nv_min_u32 v13, s{sB}, v1\nv_lshlrev_b32 v13, 7, v13")
        a(f"buffer_load_dword v80, v13, {srd(rWS)}, s{sA} offen sc1")
        a(f"s_lshl_b32 s{sA}, s{sXG}, 3\ns_and_b32 s{sB}, s{sJ}, 7\ns_add_u32 s{sA}, s{sA}, s{sB}\ns_lshl_b32 s{sA}, s{sA}, 7")
        a(f"s_lshr_b32 s{sB}, s{sJ}, 3\ns_lshl_b32 s{sB}, s{sB}, 13\ns_add_u32 s{sA}, s{sA}, s{sB}\ns_add_u32 s{sA}, s{sA}, {FL1}\nv_mov_b32 v13, 0")
        a(f"buffer_load_dword v81, v13, {srd(rWS)}, s{sA} offen sc1\nbuffer_load_dword v83, v13, {srd(rWS)}, s{sA} offen sc1")
        a(f"s_branch {lj}\n{lm}:")
        a(f"s_lshl_b32 s{sA}, s{sJ}, 5\nv_lshl_add_u32 v13, v10, 1, s{sA}")
        a(f"global_load_ushort v80, v13, {sp(sC)}\nglobal_load_ushort v81, v13, {sp(sC)} offset:16")
        a(f"s_sub_u32 s{sA}, s{sW}, 2\ns_lshl_b32 s{sA}, s{sA}, 10\ns_lshl_b32 s{sB}, s{sXG}, 7\ns_add_u32 s{sA}, s{sA}, s{sB}")
        a(f"s_mul_i32 s{sB}, s{sJ}, {16 * 6144}\ns_add_u32 s{sA}, s{sA}, s{sB}")
        a(f"v_mul_u32_u24 v13, 6144, v10\nv_lshl_add_u32 v13, v11, 4, v13\nv_add_u32 v13, s{sA}, v13\nv_add_u32 v22, {8 * 6144}, v13")
        a(f"global_load_dwordx4 v[72:75], v13, {sp(sWM)}{self.o['nt0']}\nglobal_load_dwordx4 v[76:79], v22, {sp(sWM)}{self.o['nt0']}")
        a(f"{lj}:")
        a("v_mov_b32 v24, 0\nv_mov_b32 v25, 0\nv_mov_b32 v26, 0\nv_mov_b32 v27, 0")
        lz = a.label("nz")
        a(f"s_cmp_lg_u32 s{sW}, 1\ns_cbranch_scc1 {lz}")
        a(f"v_lshrrev_b32 v8, 5, v1\nv_and_b32 v9, 31, v1\nv_mul_u32_u24 v8, 4608, v8\nv_lshl_add_u32 v8, v9, 4, v8\nv_add_u32 v8, {L_KVR + 4096}, v8")
        a("ds_write_b128 v8, v[24:27]")
        a(f"v_and_b32 v8, 1, v1\nv_bfe_u32 v9, v1, 1, 1\nv_lshlrev_b32 v8, 4, v8\nv_mul_u32_u24 v9, {KO - KE}, v9\nv_add_u32 v8, v8, v9")
        a(f"v_bfe_u32 v9, v1, 2, 1\nv_mul_u32_u24 v9, {KCH}, v9\nv_add3_u32 v8, v8, v9, 0\nv_add_u32 v8, {L_PART}, v8")
        a(f"ds_write_b128 v8, v[24:27]\n{lz}:")
        for i in range(19):
            a(f"v_mov_b32 v{32 + i}, 0")
        a(f"s_lshl_b32 s{sA}, s{sW}, 4\nv_mul_u32_u24 v8, 1040, v11\nv_lshl_add_u32 v8, v10, 1, v8\nv_add_u32 v8, s{sA}, v8")
        a("s_waitcnt vmcnt(7) lgkmcnt(0)")
        a(f"s_mul_i32 s{sT}, s{sT}, 0x9E3779B1\ns_add_u32 s{sT}, s{sT}, 0x7F4A7C15\ns_mul_i32 s{sT + 1}, s{sT}, 0x85EBCA6B\ns_xor_b32 s{sT + 1}, s{sT + 1}, 0x5BD1E995")
        a(f"s_and_b32 s{sDB}, s{sDA}, 0xffff0000\ns_lshl_b32 s{sDA}, s{sDA}, 16")
        a("s_barrier")
        self.stamp()
        a(f"global_load_ubyte v21, v14, {sp(sDBG)} sc1")
        for i in range(3):
            a(f"ds_read_u16_d16_hi v{32 + i}, v8 offset:{L_KT + (5 + i) * 128}")
        for i in range(8):
            a(f"ds_read_u16_d16_hi v{35 + i}, v8 offset:{L_KT + 1040 + i * 128}")
        a("s_waitcnt vmcnt(7)")
        a("v_lshlrev_b32 v28, 16, v30\nv_and_b32 v29, 0xffff0000, v30\nv_lshlrev_b32 v30, 16, v31\nv_and_b32 v31, 0xffff0000, v31")
        a("s_waitcnt lgkmcnt(7)")
        for i in range(8):
            a(f"ds_read_u16_d16_hi v{43 + i}, v8 offset:{L_VT + i * 128}")
        a("s_waitcnt lgkmcnt(8)")
        for i in range(8):
            a(f"v_mul_f32 v{52 + i}, v28, v{35 + i}")
        for jj in (1, 2, 3):
            for i in range(8):
                a(f"v_fmac_f32 v{52 + i}, v{28 + jj}, v{35 + i - jj}")
        a("s_waitcnt lgkmcnt(0)")
        for i in range(8):
            a(f"v_mul_f32 v{52 + i}, v{52 + i}, v{43 + i}")
        for i in range(4):
            a(f"v_cvt_pk_bf16_f32 v{60 + i}, v{59 - 2 * i}, v{58 - 2 * i}")
        a(f"v_lshlrev_b32 v12, 12, v10\nv_lshlrev_b32 v9, 4, v11\nv_sub_u32 v12, v12, v9\nv_add_u32 v12, 112, v12")
        a(f"s_lshl_b32 s{sA}, s{sXG}, 3\ns_add_u32 s{sA}, s{sA}, s{sW}\ns_lshl_b32 s{sA}, s{sA}, 15\ns_lshl_b32 s{sB}, s{sJ}, 7")
        a(f"s_sub_u32 s{sA}, s{sA}, s{sB}\ns_add_u32 s{sE}, s{sA}, {R1 + 4096 - 128}")
        a("v_and_b32 v8, 255, v0\nv_cmp_ne_u32 vcc, 0, v8\nv_lshrrev_b32 v9, 8, v0")
        a(f"v_mul_u32_u24 v9, {KCH}, v9\nv_lshl_add_u32 v8, v8, 4, v9\nv_add_u32 v8, {L_PART}, v8")
        a("s_waitcnt vmcnt(5)\nv_cndmask_b32 v20, 0, v20, vcc")
        a("v_alignbit_b32 v25, v17, v16, 16\nv_alignbit_b32 v26, v18, v17, 16\nv_alignbit_b32 v27, v19, v18, 16\nv_alignbit_b32 v24, v16, v20, 16")
        a(f"ds_write_b128 v8, v[16:19] offset:{KE}\nds_write_b128 v8, v[24:27] offset:{KO}")
        a("s_waitcnt lgkmcnt(0)\ns_barrier")
        la = a.label("na")
        a(f"s_cmp_ge_u32 s{sW}, 4\ns_cbranch_scc1 {la}")
        a(f"v_bfe_u32 v8, v1, 1, 3\nv_lshrrev_b32 v9, 4, v1\nv_lshl_add_u32 v8, v9, 2, v8\nv_lshlrev_b32 v8, 2, v8")
        a(f"v_and_b32 v9, 1, v1\nv_xor_b32 v9, 1, v9\nv_mul_u32_u24 v9, {KO - KE}, v9\nv_add_u32 v8, v8, v9")
        a(f"s_lshr_b32 s{sA}, s{sW}, 1\ns_mul_i32 s{sA}, s{sA}, {KCH}\ns_and_b32 s{sB}, s{sW}, 1\ns_lshl_b32 s{sB}, s{sB}, 8")
        a(f"s_add_u32 s{sA}, s{sA}, s{sB}\ns_add_u32 s{sA}, s{sA}, {L_PART + KE - 28}\nv_add_u32 v8, s{sA}, v8")
        for a2 in range(4):
            for aa in range(2):
                for rho in range(4):
                    d = 128 + (rho * 8 + a2 * 2 + aa) * 4
                    o = aa * 128 + rho * 16
                    a(f"ds_read2_b32 {vr(d, 2)}, v8 offset0:{o} offset1:{o + 1}")
                    a(f"ds_read2_b32 {vr(d + 2, 2)}, v8 offset0:{o + 2} offset1:{o + 3}")
            if a2 < 3:
                a("v_add_u32 v8, 1024, v8")
        a(f"{la}:")
        lp, ld = a.label("id"), a.label("iddone")
        a(f"s_mov_b32 s{sFAST}, 0\ns_mov_b32 s{sCn}, 0")
        if not self.force_slow:
            a(f"s_waitcnt vmcnt(0)\n{lp}:\nv_cmp_ne_u32 vcc, s{sID}, v21\ns_cmp_eq_u64 vcc, 0\ns_cselect_b32 s{sFAST}, 1, 0\ns_cbranch_scc1 {ld}")
            a(f"s_add_u32 s{sCn}, s{sCn}, 1\ns_cmp_ge_u32 s{sCn}, 6\ns_cbranch_scc1 {ld}")
            a(f"global_load_ubyte v21, v14, {sp(sDBG)} sc1\ns_waitcnt vmcnt(0)\ns_branch {lp}\n{ld}:")
        self.local_stores([f"buffer_store_dwordx4 v[60:63], v12, {srd(rWS)}, s{sE} offen"])
        self.stamp()
        self.flag_store(FL1, sW, sJ)
        self.stamp()
        lm2 = a.label("nm")
        a(f"s_cmp_lt_u32 s{sW}, 2\ns_cbranch_scc1 {lm2}")
        for r in (80, 81):
            a(f"v_lshlrev_b32 v{r}, 16, v{r}\nv_mul_f32 v8, 0xbfb8aa3b, v{r}\nv_exp_f32 v8, v8\nv_add_f32 v8, 1.0, v8\nv_rcp_f32 v8, v8")
            a(f"v_mul_f32 v{r}, v{r}, v8\nv_cvt_pk_bf16_f32 v{r}, v{r}, v{r}\nv_lshlrev_b32 v{r}, 16, v{r}")
        self.unpack8(32, 72)
        self.unpack8(40, 76)
        for e in range(8):
            a(f"v_mul_f32 v{32 + e}, v80, v{32 + e}")
        for e in range(8):
            a(f"v_fmac_f32 v{32 + e}, v81, v{40 + e}")
        for e in range(4):
            a(f"v_permlane32_swap_b32 v{32 + e}, v{36 + e}")
        for e in range(4):
            a(f"v_add_f32 v{32 + e}, v{32 + e}, v{36 + e}")
        for e in range(2):
            a(f"v_permlane16_swap_b32 v{32 + e}, v{34 + e}")
        for e in range(2):
            a(f"v_add_f32 v{32 + e}, v{32 + e}, v{34 + e}")
        for e in range(2):
            a(f"v_add_f32_dpp v{32 + e}, v{32 + e}, v{32 + e} row_ror:8 row_mask:0xf bank_mask:0xf")
        a(f"v_mov_b32 v34, s{sT}\nv_mov_b32 v35, s{sT + 1}")
        a("v_and_b32 v8, 7, v1\nv_lshrrev_b32 v9, 4, v1\nv_lshl_add_u32 v8, v8, 2, v9\nv_lshlrev_b32 v8, 4, v8")
        a(f"s_mul_i32 s{sA}, s{sP}, 3072\ns_lshl_b32 s{sB}, s{sW}, 9\ns_add_u32 s{sA}, s{sA}, s{sB}\ns_add_u32 s{sE}, s{sA}, {MODP - 1024}")
        a("s_mov_b32 exec_lo, 0x00ff00ff\ns_mov_b32 exec_hi, 0x00ff00ff")
        self.local_stores([f"buffer_store_dwordx4 v[32:35], v8, {srd(rWS)}, s{sE} offen"])
        a(f"s_mov_b64 exec, -1\n{lm2}:")
        a(f"s_and_b32 s{sB}, s{sW}, 3\ns_lshl_b32 s{sB}, s{sB}, 3\ns_sub_u32 s{sB}, 31, s{sB}\nv_sub_u32 v8, s{sB}, v10\nv_lshlrev_b32 v8, 2, v8")
        a(f"s_lshr_b32 s{sB}, s{sJ}, 2\nv_lshlrev_b32 v12, 4, v0\ns_lshl_b32 s{sE}, s{sP}, 13\ns_add_u32 s{sE}, s{sE}, {R1}")
        self.flag_poll(FL1, sB, 8)
        a(f"buffer_load_dwordx4 v[16:19], v12, {srd(rWS)}, s{sE} offen sc1")
        self.stamp()
        a(f"v_lshrrev_b32 v9, 8, v0\nv_lshl_add_u32 v8, v9, 9, v12\nv_add_u32 v8, {L_KVR}, v8")
        a("s_waitcnt vmcnt(0)\nds_write_b128 v8, v[16:19]\ns_waitcnt lgkmcnt(0)\ns_barrier")
        self.stamp()

    def conv(self):
        a = self.a
        lh, lj = a.label("help"), a.label("cj")
        a(f"s_cmp_ge_u32 s{sW}, 4\ns_cbranch_scc1 {lh}")
        a("v_and_b32 v9, 15, v1\nv_lshrrev_b32 v10, 4, v1\nv_lshlrev_b32 v8, 4, v10\nv_lshlrev_b32 v11, 5, v9\nv_sub_u32 v8, v8, v11")
        a(f"s_lshr_b32 s{sA}, s{sW}, 1\ns_mul_i32 s{sA}, s{sA}, 4608\ns_and_b32 s{sB}, s{sW}, 1\ns_lshl_b32 s{sB}, s{sB}, 8")
        a(f"s_add_u32 s{sA}, s{sA}, s{sB}\ns_add_u32 s{sA}, s{sA}, {L_KVR + 480}\nv_add_u32 v8, s{sA}, v8")

        def rd(rho, b):
            return f"ds_read_b128 {vr(32 + (rho & 1) * 32 + b * 4, 4)}, v8 offset:{512 * (7 - b) + 64 * rho}"

        for b in range(8):
            a(rd(0, b))
        a(f"global_load_dwordx4 v[2:5], v15, {sp(sQ)}{self.o['nt0']}")
        a(f"v_lshl_add_u32 v11, v10, 2, v9\nv_and_b32 v11, 15, v11\nv_lshl_add_u32 v11, v10, 4, v11\nv_lshlrev_b32 v11, 4, v11")
        a(f"s_lshl_b32 s{sA}, s{sW}, 13\ns_add_u32 s{sA}, s{sA}, {L_PART}\nv_add_u32 v11, s{sA}, v11")
        for rho in range(4):
            def mf(aa, b):
                t = aa + b
                c = "0" if (rho == 0 and b == 0) else vr(96 + 4 * t, 4)
                return f"v_mfma_f32_16x16x32_bf16 {vr(96 + 4 * t, 4)}, {vr(128 + (rho * 8 + aa) * 4, 4)}, {vr(32 + (rho & 1) * 32 + b * 4, 4)}, {c}"
            if rho < 3:
                n = 0
                for b in range(8):
                    if rho == 0:
                        a(f"s_waitcnt lgkmcnt({min(15, 7 - b + min(n, 8))})")
                    elif b == 0:
                        a("s_waitcnt lgkmcnt(0)")
                    for aa in range(8 - b):
                        a(mf(aa, b))
                        if aa % 2 == 1 and n < 8:
                            a(rd(rho + 1, n))
                            n += 1
                assert n == 8
            else:
                a("s_waitcnt lgkmcnt(0)")
                order = [7, 6, 5, 4, 3, 2, 1, 0]
                for idx, t in enumerate(order):
                    for b in range(t + 1):
                        a(mf(t - b, b))
                    if idx >= 2:
                        tp = order[idx - 2]
                        a(f"ds_write_b128 v11, {vr(96 + 4 * tp, 4)} offset:{1024 * tp}")
                for tp in order[-2:]:
                    a(f"ds_write_b128 v11, {vr(96 + 4 * tp, 4)} offset:{1024 * tp}")
        a(f"s_branch {lj}\n{lh}:")
        l4 = a.label("n4")
        a(f"s_cmp_lg_u32 s{sW}, 4\ns_cbranch_scc1 {l4}")
        a(f"v_and_b32 v8, 31, v1\nv_mul_u32_u24 v8, 3072, v8\nv_lshrrev_b32 v9, 5, v1\nv_mul_u32_u24 v10, 1536, v9\nv_add_u32 v8, v8, v10")
        a(f"s_mul_i32 s{sA}, s{sXG}, {32 * 3072}\ns_lshl_b32 s{sB}, s{sJ}, 4\ns_add_u32 s{sA}, s{sA}, s{sB}\ns_add_u32 s{sE}, s{sA}, {MODP}")
        self.tagged_loads([(f"buffer_load_dwordx4 {vr(32 + 4 * i, 4)}, v8, {srd(rWS)}, s{sE} offen offset:{512 * i} sc1", vr(34 + 4 * i, 2), True) for i in range(3)])
        regs = [32, 33, 36, 37, 40, 41]
        for sh in (8, 4, 2, 1):
            for r in regs:
                a(f"v_add_f32_dpp v{r}, v{r}, v{r} row_ror:{sh} row_mask:0xf bank_mask:0xf")
        for i, r in enumerate(regs):
            a(f"v_mov_b32 v{44 + i}, v{r}")
        for i, r in enumerate(regs):
            a(f"v_permlane16_swap_b32 v{r}, v{44 + i}")
        for i, r in enumerate(regs):
            a(f"v_add_f32 v{r}, v{r}, v{44 + i}")
        a(f"v_cvt_pk_bf16_f32 v32, v32, v33\nv_cvt_pk_bf16_f32 v33, v36, v37\nv_cvt_pk_bf16_f32 v34, v40, v41\nv_mov_b32 v35, s{sT}")
        a(f"v_lshlrev_b32 v8, 4, v9\ns_lshl_b32 s{sA}, s{sP}, 5\ns_add_u32 s{sA}, s{sA}, {MODF}")
        a(f"s_mov_b32 exec_lo, 1\ns_mov_b32 exec_hi, 1\nbuffer_store_dwordx4 v[32:35], v8, {srd(rWS)}, s{sA} offen sc1\ns_mov_b64 exec, -1\n{l4}:")
        a(f"global_load_dwordx4 v[2:5], v15, {sp(sQ)}{self.o['nt0']}")
        self.w1_setup()
        a(f"v_add_u32 v13, {(-32 * 3584) & 0xffffffff}, v14")
        self.w1_blocks(self.o["nb1"], True)
        a(f"{lj}:")
        a("v_lshrrev_b32 v8, 3, v1\nv_bfe_u32 v9, v1, 1, 2\nv_lshl_add_u32 v8, v9, 2, v8\nv_and_b32 v8, 15, v8\nv_lshl_add_u32 v8, v9, 4, v8")
        a(f"v_and_b32 v9, 1, v1\nv_lshl_add_u32 v8, v8, 1, v9\nv_lshlrev_b32 v8, 3, v8\ns_lshl_b32 s{sA}, s{sW}, 10\ns_add_u32 s{sA}, s{sA}, {L_PART}")
        a(f"v_add_u32 v8, s{sA}, v8\nv_xor_b32 v9, 128, v8")
        a(f"s_lshl_b32 s{sA}, s{sW}, 9\ns_sub_u32 s{sA}, {L_KVR + 4092 - 256}, s{sA}\nv_lshlrev_b32 v10, 2, v1\nv_sub_u32 v10, s{sA}, v10")
        a("s_waitcnt lgkmcnt(0)\ns_barrier")
        self.stamp()
        for h, ad in ((0, 8), (1, 9)):
            for mw in range(4):
                a(f"ds_read_b64 {vr(32 + h * 8 + mw * 2, 2)}, v{ad} offset:{8192 * mw}")
            for ch in range(2):
                a(f"ds_read_b32 v{48 + h * 2 + ch}, v10 offset:{4608 * ch + 256 * (1 - h)}")
        a(f"v_mov_b32 v62, s{sT}\nv_mov_b32 v63, s{sT + 1}\nv_mov_b32 v66, s{sT}\nv_mov_b32 v67, s{sT + 1}")
        a(f"s_mul_i32 s{sA}, s{sW}, {ZG}\ns_lshl_b32 s{sB}, s{sP}, 11\ns_add_u32 s{sA}, s{sA}, s{sB}\ns_add_u32 s{sE}, s{sA}, {Z}\nv_lshlrev_b32 v11, 4, v1")
        for h in range(2):
            a(f"s_waitcnt lgkmcnt({6 * (1 - h)})")
            for ch in range(2):
                p = 32 + h * 8 + ch * 4
                kv = 48 + h * 2 + ch
                a(f"v_pk_add_f32 {vr(p, 2)}, {vr(p, 2)}, {vr(p + 2, 2)}")
                a(f"v_and_b32 v52, 0xffff0000, v{kv}\nv_lshlrev_b32 v53, 16, v{kv}")
                a(f"v_fmac_f32 v{p}, s{sDA + ch}, v52\nv_fmac_f32 v{p + 1}, s{sDA + ch}, v53")
            p = 32 + h * 8
            a(f"v_cvt_pk_bf16_f32 v{60 + 4 * h}, v{p}, v{p + 4}\nv_cvt_pk_bf16_f32 v{61 + 4 * h}, v{p + 1}, v{p + 5}")
            a(f"buffer_store_dwordx4 {vr(60 + 4 * h, 4)}, v11, {srd(rWS)}, s{sE} offen offset:{1024 * h} sc1")
        self.stamp()

    def p2(self):
        a = self.a
        self.w1_setup()
        a(f"s_mov_b32 s{sE}, {MODF}\nv_lshlrev_b32 v10, 4, v0\ns_barrier")

        def ln1():
            n = self.w1_blocks(self.o["nb2"])
            a(f"s_waitcnt vmcnt({n + 3})")
            self.unpack8(40, 2)
            self.ln_stats(40, 6, 7, 56)
            return n

        self.tagged_loads([(f"buffer_load_dwordx4 v[28:31], v10, {srd(rWS)}, s{sE} offen sc1", "v31", False)], ln1)
        a(f"v_and_b32 v9, 1, v0\nv_mul_u32_u24 v9, 3072, v9\nv_lshrrev_b32 v8, 1, v0\nv_lshl_add_u32 v8, v8, 2, v9\nv_add_u32 v8, {L_MOD}, v8")
        for i in range(3):
            a(f"ds_write_b32 v8, v{28 + i} offset:{1024 * i}")
        self.stamp()
        a(f"v_lshrrev_b32 v8, 2, v0\nv_and_b32 v9, 3, v0\nv_lshlrev_b32 v10, 11, v8\nv_lshl_add_u32 v10, v9, 4, v10")
        a(f"s_mul_i32 s{sA}, s{sXG}, {ZG}\ns_lshl_b32 s{sB}, s{sJ}, 6\ns_add_u32 s{sA}, s{sA}, s{sB}\ns_add_u32 s{sE}, s{sA}, {Z}\ns_add_u32 s{sF}, s{sE}, {128 * 2048}")
        a(f"v_mul_u32_u24 v9, 2080, v9\nv_lshl_add_u32 v11, v8, 2, v9\nv_add_u32 v11, {L_PART}, v11")
        X, N, T1, T2, SB, CB, M = 40, 48, 56, 64, 72, 80, 96
        a("s_waitcnt lgkmcnt(0)\ns_barrier")

        def behind():
            a(f"s_lshl_b32 s{sA}, s{sP}, 13\ns_add_u32 s{sA}, s{sA}, {R1}\nv_lshlrev_b32 v9, 4, v0\nbuffer_load_dword v142, v9, {srd(rWS)}, s{sA} offen sc1")
            if self.o["nb3"]:
                a("s_barrier")
            n = self.w1_blocks(self.o["nb3"])
            a(f"v_lshlrev_b32 v9, 4, v1\nv_add_u32 v9, {L_MOD}, v9")
            for i in range(5):
                a(f"ds_read_b128 {vr(M + 4 * i, 4)}, v9 offset:{1024 * i}")
            for i in range(0, 8, 2):
                a(f"v_pk_add_f32 {vr(N + i, 2)}, {vr(X + i, 2)}, v[6:7] op_sel_hi:[1,0] neg_lo:[0,1] neg_hi:[0,1]")
            for i in range(0, 8, 2):
                a(f"v_pk_mul_f32 {vr(N + i, 2)}, {vr(N + i, 2)}, v[6:7] op_sel:[0,1] op_sel_hi:[1,1]")
            a("s_waitcnt lgkmcnt(0)")
            self.unpack8(T1, M)
            self.unpack8(T2, M + 4)
            for i in range(0, 8, 2):
                a(f"v_pk_add_f32 {vr(T1 + i, 2)}, {vr(T1 + i, 2)}, {vr(N + i, 2)}")
            for i in range(0, 8, 2):
                a(f"v_pk_fma_f32 {vr(N + i, 2)}, {vr(N + i, 2)}, {vr(T2 + i, 2)}, {vr(T1 + i, 2)}")
            self.unpack8(T1, M + 8)
            for i in range(0, 8, 2):
                a(f"v_pk_mul_f32 {vr(N + i, 2)}, {vr(N + i, 2)}, {vr(T1 + i, 2)}")
            self.unpack8(SB, M + 12)
            self.unpack8(CB, M + 16)
            a(f"v_mov_b32 v8, {f2h(ALPHA)}")
            for i in range(0, 8, 2):
                a(f"v_pk_fma_f32 {vr(CB + i, 2)}, {vr(CB + i, 2)}, v[8:9], v[8:9] op_sel_hi:[1,0,0]")
            for i in range(0, 8, 2):
                a(f"v_pk_mul_f32 {vr(SB + i, 2)}, {vr(SB + i, 2)}, v[8:9] op_sel_hi:[1,0]")
            a(f"v_lshlrev_b32 v9, 4, v1\ns_mul_i32 s{sA}, s{sW}, 1040\ns_add_u32 s{sA}, s{sA}, {L_PART}\nv_add_u32 v12, s{sA}, v9")
            a("v_lshrrev_b32 v13, 1, v1\nv_and_b32 v9, 1, v1\nv_lshlrev_b32 v13, 8, v13\nv_lshl_add_u32 v13, v9, 4, v13")
            return n + 1

        self.tagged_loads([(f"buffer_load_dwordx4 v[28:31], v10, {srd(rWS)}, s{sE} offen sc1", "v[30:31]", True),
                           (f"buffer_load_dwordx4 v[32:35], v10, {srd(rWS)}, s{sF} offen sc1", "v[34:35]", True)], behind)
        a("ds_write_b32 v11, v28\nds_write_b32 v11, v29 offset:1040\nds_write_b32 v11, v32 offset:512\nds_write_b32 v11, v33 offset:1552")
        self.stamp()
        a(f"s_lshl_b32 s{sA}, s{sP}, 13\ns_lshl_b32 s{sB}, s{sW}, 5\ns_add_u32 s{sA}, s{sA}, s{sB}\ns_add_u32 s{sE}, s{sA}, {R1}")
        a("s_waitcnt lgkmcnt(0)\ns_barrier\nds_read_b128 v[36:39], v12\ns_waitcnt lgkmcnt(0)")
        self.unpack8(T2, 36)
        for i in range(0, 8, 2):
            a(f"v_pk_fma_f32 {vr(X + i, 2)}, {vr(N + i, 2)}, {vr(T2 + i, 2)}, {vr(X + i, 2)}")
        self.ln_stats(X, 6, 7, T1)
        for i in range(0, 8, 2):
            a(f"v_pk_add_f32 {vr(N + i, 2)}, {vr(X + i, 2)}, v[6:7] op_sel_hi:[1,0] neg_lo:[0,1] neg_hi:[0,1]")
        for i in range(0, 8, 2):
            a(f"v_pk_mul_f32 {vr(CB + i, 2)}, {vr(CB + i, 2)}, v[6:7] op_sel:[0,1] op_sel_hi:[1,1]")
        for i in range(0, 8, 2):
            a(f"v_pk_fma_f32 {vr(N + i, 2)}, {vr(N + i, 2)}, {vr(CB + i, 2)}, {vr(SB + i, 2)}")
        for d, (p, q) in enumerate(((0, 1), (2, 3), (4, 5), (6, 7))):
            a(f"v_cvt_pk_bf16_f32 v{28 + d}, v{N + p}, v{N + q}")
        for i in range(4):
            a(f"v_cvt_pk_bf16_f32 v{2 + i}, v{X + 2 * i}, v{X + 2 * i + 1}")
        self.local_stores([f"buffer_store_dwordx4 v[28:31], v13, {srd(rWS)}, s{sE} offen",
                           f"global_store_dwordx4 v15, v[2:5], {sp(sOUT)}"])
        self.stamp()
        a("v_bfe_u32 v8, v1, 3, 1\nv_lshlrev_b32 v8, 13, v8\nv_and_b32 v9, 7, v1\nv_lshl_add_u32 v8, v9, 5, v8")
        a("v_lshrrev_b32 v9, 5, v1\nv_lshl_add_u32 v8, v9, 8, v8\nv_bfe_u32 v9, v1, 4, 1\nv_lshl_add_u32 v46, v9, 4, v8\nv_add_u32 v47, 16384, v46")
        a("v_lshrrev_b32 v8, 4, v1\nv_bfe_u32 v9, v1, 2, 2\nv_lshl_add_u32 v8, v8, 3, v9\nv_lshlrev_b32 v8, 7, v8")
        a("v_bfe_u32 v9, v1, 3, 2\nv_lshl_add_u32 v8, v9, 5, v8\nv_and_b32 v9, 3, v1\nv_lshl_add_u32 v10, v9, 3, v8")
        for nt in range(1, 4):
            a(f"v_xor_b32 v{10 + nt}, {32 * nt}, v10")
        for nt in range(4):
            a(f"v_add_u32 v{40 + nt}, {L_U}, v{10 + nt}")
        a(f"s_lshr_b32 s{sE}, s{sJ}, 2\ns_and_b32 s{sF}, s{sJ}, 3\ns_lshl_b32 s{sF}, s{sF}, 3\ns_add_u32 s{sF}, s{sF}, s{sW}")
        self.flag_store(FL3, sE, sF)
        self.bump_epoch()
        a("s_barrier")

    def spare(self):
        a = self.a
        a(f"s_sub_u32 s{sE}, s{sJ}, 28\nv_lshlrev_b32 v8, 7, v0")
        k = 0
        for task in self.o["spare"]:
            if task == "z":
                a(f"s_mul_i32 s{sA}, s{sXG}, {ZG}\ns_mul_i32 s{sB}, s{sE}, 98304\ns_add_u32 s{sA}, s{sA}, s{sB}\ns_add_u32 s{sA}, s{sA}, {Z + 0x80000}")
                a(f"buffer_load_dword v{16 + k}, v8, {srd(rWS)}, s{sA} offen sc1\nv_add_u32 v9, 65536, v8\nv_min_u32 v9, {98304 - 128}, v9")
                a(f"buffer_load_dword v{17 + k}, v9, {srd(rWS)}, s{sA} offen sc1")
            elif task == "y":
                a(f"s_mul_i32 s{sA}, s{sXG}, {ZG}\ns_lshl_b32 s{sB}, s{sE}, 17\ns_add_u32 s{sA}, s{sA}, s{sB}\ns_add_u32 s{sA}, s{sA}, {Z}")
                a(f"buffer_load_dword v{16 + k}, v8, {srd(rWS)}, s{sA} offen sc1\nv_add_u32 v9, 65536, v8")
                a(f"buffer_load_dword v{17 + k}, v9, {srd(rWS)}, s{sA} offen sc1")
            elif task == "d":
                n = (self.sp_end - self.wd_done) // 4
                a(f"s_mul_i32 s{sA}, s{sE}, {n}\ns_add_u32 s{sA}, s{sA}, {self.wd_done}\ns_lshl_b32 s{sA}, s{sA}, 7")
                for i in range(0, n, 512):
                    a(f"v_add_u32 v9, {128 * i}, v8\nv_min_u32 v9, {128 * (n - 1)}, v9\nv_add_u32 v9, s{sA}, v9\nglobal_load_dword v{16 + k}, v9, {sp(sWD)}")
            elif task == "o":
                a(f"s_lshl_b32 s{sA}, s{sXG}, 2\ns_add_u32 s{sA}, s{sA}, s{sE}\ns_lshl_b32 s{sA}, s{sA}, 16\nv_add_u32 v9, s{sA}, v8")
                a(f"global_load_dword v{16 + k}, v9, {sp(sOUT)} sc1")
            else:
                a(f"s_add_u32 s{sA}, s{sXG}, {task}\ns_and_b32 s{sA}, s{sA}, 7\ns_lshl_b32 s{sA}, s{sA}, 2\ns_add_u32 s{sA}, s{sA}, s{sE}\ns_mul_i32 s{sA}, s{sA}, 57344")
                a(f"v_min_u32 v9, {57344 - 128}, v8\nbuffer_load_dword v{16 + k}, v9, {srd(rG)}, s{sA} offen\nbuffer_load_dword v{17 + k}, v9, {srd(rU)}, s{sA} offen")
            a("s_barrier")
            k += 2
        a("s_waitcnt vmcnt(0)")

    def gemm1(self):
        a = self.a
        ACC, HB, WF = 80, 48, 16
        DEPTH, D0, AHEAD, SLOTS = self.o["depth"], self.o["d0"], 4, 6
        lsp, lg2 = a.label("work"), a.label("g2")
        a(f"s_cmp_lt_u32 s{sJ}, 28\ns_cbranch_scc1 {lsp}")
        n0 = self.nst
        self.stamp()
        self.sp_end = 14336 - 28 * 8 * self.o["wk_lines"]
        self.spare()
        self.stamp()
        for x in self.wd_dma():
            a(x)
        a("s_waitcnt vmcnt(0)")
        self.stamp()
        self.nst = n0
        a(f"s_branch {lg2}\n{lsp}:")
        a(f"s_lshl_b32 s{sF}, s{sXG}, 3\ns_add_u32 s{sF}, s{sF}, s{sW}\ns_lshl_b32 s{sF}, s{sF}, 15\ns_add_u32 s{sF}, s{sF}, {R1}")
        a("v_and_b32 v8, 31, v1\nv_lshlrev_b32 v8, 2, v8")
        self.flag_poll(FL3, sW, 8)
        self.stamp()
        vm = []

        def wait(*tags):
            last = max(i for i, t in enumerate(vm) if t in tags)
            a(f"s_waitcnt vmcnt({len(vm) - 1 - last})")

        def hl(kk, rt):
            if kk % 2 == 0 and rt == 0:
                a(f"s_add_u32 s{sE}, s{sXG}, {kk // 2}\ns_and_b32 s{sE}, s{sE}, 7\ns_lshl_b32 s{sE}, s{sE}, 10\ns_add_u32 s{sE}, s{sE}, s{sF}")
            a(f"buffer_load_dwordx4 {vr(HB + (kk % DEPTH) * 8 + rt * 4, 4)}, v{46 + rt}, {srd(rWS)}, s{sE} offen offset:{512 * (kk & 1)} sc1")
            vm.append(("h", kk))

        def wr(n):
            kk, t = divmod(n, 8)
            ad = (10, 40)[t & 1] + (t >> 1)
            return [f"ds_read_b64_tr_b16 {vr(WF + (n % SLOTS) * 4 + 2 * u, 2)}, v{ad} offset:{kk * 4096 + u * 512}" for u in range(2)]

        todo = [(kk, rt) for kk in range(16) for rt in range(2)]
        for _ in range(2 * D0):
            hl(*todo.pop(0))
        for n in range(AHEAD):
            for x in wr(n):
                a(x)
        eb, step = self.nb, self.o["w_step"]
        wk = self.o["wk_lines"]
        a(f"s_lshl_b32 s{sA}, s{sJ}, 3\ns_add_u32 s{sA}, s{sA}, s{sW}\ns_mul_i32 s{sA}, s{sA}, {wk}\ns_add_u32 s{sA}, s{sA}, {self.sp_end}")
        a(f"v_min_u32 v45, {max(wk - 1, 0)}, v1\nv_add_lshl_u32 v45, v45, s{sA}, 7")
        nb, vis = eb, eb
        for kk in range(16):
            if kk % 2 == 1 and (kk + 1) // 2 < 8 and (kk + 1) // 2 >= vis:
                first = (kk + 1) // 2
                hpos = max(i for i, t in enumerate(vm) if t == ("h", kk))
                while vis < nb and (vis == first or max(i for i, t in enumerate(vm) if t == ("w", vis)) < hpos):
                    vis += 1
                assert vis > first
                wait(("h", kk), ("w", vis - 1))
                a("s_barrier")
            else:
                wait(("h", kk))
                if kk == 1 and eb == 8:
                    a("s_barrier")
            for t in range(8):
                n = kk * 8 + t
                left = min(128, n + AHEAD) - n - 1
                a(f"s_waitcnt lgkmcnt({2 * left})")
                for rt in range(2):
                    acc = vr(ACC + (rt * 8 + t) * 4, 4)
                    c = "0" if kk == 0 else acc
                    a(f"v_mfma_f32_16x16x32_bf16 {acc}, {vr(WF + (n % SLOTS) * 4, 4)}, {vr(HB + (kk % DEPTH) * 8 + rt * 4, 4)}, {c}")
                    if n + AHEAD < 128:
                        a(wr(n + AHEAD)[rt])
                if t in (0, 2, 4, 6) and todo and todo[0][0] < kk + DEPTH:
                    hl(*todo.pop(0))
                if t == 3 and nb < 8 and kk >= int((nb - eb) * step):
                    self.w1_block(nb)
                    vm.extend([("w", nb)] * 2)
                    nb += 1
                if t == 5 and wk and kk == self.o["wk_at"]:
                    a(f"global_load_dword v44, v45, {sp(sWD)}")
                    vm.append("d")
        assert nb == 8 and not todo
        self.stamp()
        a("s_waitcnt vmcnt(0)\ns_barrier")
        dma = self.wd_dma()
        n0 = len(a.lines)
        a(f"v_mov_b32 v44, {f2h(C1 / ALPHA)}\nv_lshlrev_b32 v46, 4, v1")
        a(f"s_mul_i32 s{sA}, s{sW}, {2 * 57344}\ns_lshl_b32 s{sB}, s{sJ}, 11\ns_add_u32 s{sA}, s{sA}, s{sB}")
        a(f"s_mul_i32 s{sB}, s{sXG}, {ZG}\ns_add_u32 s{sA}, s{sA}, s{sB}\ns_add_u32 s{sE}, s{sA}, {Z}\ns_add_u32 s{sF}, s{sE}, 57344")
        for rt in range(2):
            base = ACC + rt * 32
            pairs = [(base + 8 * tt + 2 * h, base + 8 * tt + 4 + 2 * h) for tt in range(4) for h in range(2)]
            T, O = 48, 64 + 8 * rt
            for d, (g, u) in enumerate(pairs):
                a(f"v_pk_fma_f32 {vr(T + 2 * d, 2)}, {vr(g, 2)}, {vr(g, 2)}, v[44:45] op_sel_hi:[1,1,0]")
            for d, (g, u) in enumerate(pairs):
                a(f"v_pk_mul_f32 {vr(T + 2 * d, 2)}, {vr(T + 2 * d, 2)}, {vr(g, 2)} neg_lo:[0,1] neg_hi:[0,1]")
            for d, (g, u) in enumerate(pairs):
                a(f"v_exp_f32 v{T + 2 * d}, v{T + 2 * d}\nv_exp_f32 v{T + 2 * d + 1}, v{T + 2 * d + 1}")
            for d, (g, u) in enumerate(pairs):
                a(f"v_pk_mul_f32 {vr(u, 2)}, {vr(u, 2)}, {vr(g, 2)}")
            for d, (g, u) in enumerate(pairs):
                a(f"v_pk_add_f32 {vr(T + 2 * d, 2)}, {vr(T + 2 * d, 2)}, 1.0 op_sel_hi:[1,0]")
            for d, (g, u) in enumerate(pairs):
                a(f"v_rcp_f32 v{T + 2 * d}, v{T + 2 * d}\nv_rcp_f32 v{T + 2 * d + 1}, v{T + 2 * d + 1}")
            for d, (g, u) in enumerate(pairs):
                a(f"v_pk_mul_f32 {vr(u, 2)}, {vr(u, 2)}, {vr(T + 2 * d, 2)}")
            for d, (g, u) in enumerate(pairs):
                a(f"v_cvt_pk_bf16_f32 v{O + d}, v{u}, v{u + 1}")
            so_ = (sE, sF)[rt]
            self.local_stores([f"buffer_store_dwordx4 {vr(O, 4)}, v46, {srd(rWS)}, s{so_} offen",
                               f"buffer_store_dwordx4 {vr(O + 4, 4)}, v46, {srd(rWS)}, s{so_} offen offset:1024"])
        body, out, gap = a.lines[n0:], [], self.o["dma_gap"]
        cnt = gap
        for ln in body:
            if dma and ln.startswith("v_"):
                if cnt >= gap:
                    out += dma.pop(0).split("\n")
                    cnt = 0
                cnt += 1
            out.append(ln)
        assert not dma
        a.lines[n0:] = out
        self.stamp()
        self.flag_store(FL4, sW, sJ)
        a(f"{lg2}:")

    WD = 144

    def wd_dma(self):
        a = self.a
        self.mk_srd(rD, sWD, 1792 * 1024)
        a("v_lshrrev_b32 v9, 3, v1\nv_lshrrev_b32 v10, 4, v1\nv_lshlrev_b32 v10, 1, v10\nv_and_b32 v8, 7, v1\nv_xor_b32 v10, v10, v8")
        a("v_lshlrev_b32 v9, 10, v9\nv_lshl_add_u32 v14, v10, 4, v9")
        a(f"s_and_b32 s{sA}, s{sJ}, 1\ns_lshl_b32 s{sA}, s{sA}, 3\ns_add_u32 s{sA}, s{sA}, s{sW}\ns_mul_i32 s{sA}, s{sA}, {112 * 1024}")
        a(f"s_bfe_u32 s{sB}, s{sJ}, 0x30001\ns_lshl_b32 s{sB}, s{sB}, 7\ns_add_u32 s{sWO}, s{sA}, s{sB}\ns_mul_i32 s{sWP}, s{sW}, 14336")
        return [f"s_add_u32 m0, s{sWP}, {1024 * i}\ns_add_u32 s{sGt}, s{sWO}, {8192 * i}\nbuffer_load_dwordx4 v14, {srd(rD)}, s{sGt} offen lds" for i in range(14)]

    def wd_setup(self):
        a = self.a
        a(f"s_and_b32 s{sA}, s{sW}, 3\ns_mul_i32 s{sA}, s{sA}, 28672\nv_lshrrev_b32 v9, 2, v1\nv_bfe_u32 v8, v1, 3, 2\nv_lshlrev_b32 v9, 7, v9")
        a(f"v_lshl_add_u32 v9, v8, 5, v9\nv_and_b32 v8, 3, v1\nv_lshl_add_u32 v9, v8, 3, v9\nv_add_u32 v62, s{sA}, v9")
        for nt in range(1, 4):
            a(f"v_xor_b32 v{62 + nt}, {32 * nt}, v62")

    def wd_read(self):
        for f in range(7):
            for nt in range(4):
                for u in range(2):
                    self.a(f"ds_read_b64_tr_b16 {vr(self.WD + (f * 4 + nt) * 4 + 2 * u, 2)}, v{62 + nt} offset:{(32 * f + 16 * u) * 128}")

    def gemm2(self):
        a = self.a
        HB, ACC, GB, RD, XU = 16, 72, 104, 112, 48
        RING, R0 = self.o["ring"], self.o["r0"]
        assert RING <= 8
        self.wd_setup()
        a("s_barrier")
        self.wd_read()
        sQ4, sRO, sOWN = sKW, sWP, sWO
        a(f"s_and_b32 s{sQ4}, s{sW}, 3\ns_and_b32 s{sA}, s{sW}, 4\ns_lshr_b32 s{sB}, s{sJ}, 4\ns_lshl_b32 s{sB}, s{sB}, 1\ns_add_u32 s{sF}, s{sA}, s{sB}")
        a(f"s_and_b32 s{sA}, s{sJ}, 1\ns_add_u32 s{sRO}, s{sF}, s{sA}\ns_lshl_b32 s{sA}, s{sA}, 2\ns_add_u32 s{sA}, s{sA}, s{sQ4}\ns_mul_i32 s{sE}, s{sA}, 7")
        a(f"s_lshr_b32 s{sA}, s{sE}, 1\nv_and_b32 v8, 3, v1\nv_add_u32 v8, s{sA}, v8\nv_bfe_u32 v9, v1, 2, 1\nv_lshlrev_b32 v8, 2, v8\nv_lshl_add_u32 v8, v9, 7, v8")
        a(f"s_mul_i32 s{sB}, s{sXG}, {ZG}\ns_lshl_b32 s{sE}, s{sE}, 10\ns_add_u32 s{sE}, s{sE}, s{sB}\ns_add_u32 s{sE}, s{sE}, {Z}")
        a(f"s_mul_i32 s{sA}, s{sRO}, {2 * 57344}\ns_add_u32 s{sOWN}, s{sE}, s{sA}\ns_xor_b32 s{sA}, s{sRO}, 1\ns_mul_i32 s{sA}, s{sA}, {2 * 57344}\ns_add_u32 s{sGt}, s{sE}, s{sA}")
        a("v_lshlrev_b32 v6, 4, v1\nv_add_u32 v7, 4096, v6")
        vm = []

        def load(n):
            i, f = divmod(n, 7)
            if f == 0:
                a(f"s_add_u32 s{sE}, s{(sGt, sOWN)[i >> 1]}, {(i & 1) * 57344}")
            a(f"buffer_load_dwordx4 {vr(HB + (n % RING) * 4, 4)}, v{6 + (f >> 2)}, {srd(rWS)}, s{sE} offen offset:{1024 * (f & 3)} sc1")
            vm.append(n)

        def wait(tag):
            a(f"s_waitcnt vmcnt({len(vm) - 1 - vm.index(tag)})")

        def dump(i, nt):
            a(f"ds_write_b128 v{12 + (nt & 1)}, {vr(ACC + ((i & 1) * 4 + nt) * 4, 4)} offset:{(i >> 1) * 8192 + (i & 1) * 4096 + nt * 1024}")

        def finalise(ph, xtag):
            for q in range(4):
                for h in range(2):
                    a(f"ds_read_b128 {vr(RD + 8 * q + 4 * h, 4)}, v14 offset:{q * 16384 + ph * 8192 + 256 * h}")
            wait(xtag)
            self.unpack8(XU, 2)
            for q in range(1, 4):
                a(f"s_waitcnt lgkmcnt({2 * (3 - q)})")
                for e in range(8):
                    a(f"v_add_f32 v{RD + e}, v{RD + e}, v{RD + 8 * q + e}")
            for e in range(8):
                a(f"v_fmac_f32 v{XU + e}, v{RD + e}, v{GB + e}")
            for e in range(4):
                a(f"v_cvt_pk_bf16_f32 v{56 + e}, v{XU + 2 * e}, v{XU + 2 * e + 1}")

        self.flag_poll(FL4, sF, 8)
        self.stamp()
        for n in range(R0):
            load(n)
        nxt = R0
        a("v_lshrrev_b32 v12, 5, v1\nv_lshl_add_u32 v12, v12, 2, v1\nv_and_b32 v12, 15, v12\nv_and_b32 v13, 48, v1\nv_or_b32 v12, v12, v13")
        a(f"s_lshl_b32 s{sA}, s{sW}, 14\nv_lshl_add_u32 v12, v12, 4, s{sA}\nv_xor_b32 v13, 128, v12")
        a(f"v_lshrrev_b32 v10, 3, v1\nv_and_b32 v11, 7, v1\ns_and_b32 s{sA}, s{sW}, 1\ns_lshl_b32 s{sA}, s{sA}, 3\nv_and_b32 v14, 3, v1\nv_lshl_add_u32 v14, v14, 2, v10")
        a(f"v_add_u32 v14, s{sA}, v14\nv_and_b32 v14, 15, v14\nv_lshl_add_u32 v14, v11, 5, v14")
        a(f"s_and_b32 s{sA}, s{sW}, 4\ns_lshl_b32 s{sA}, s{sA}, 14\ns_and_b32 s{sB}, s{sW}, 2\ns_lshl_b32 s{sB}, s{sB}, 11\ns_add_u32 s{sA}, s{sA}, s{sB}\nv_lshl_add_u32 v14, v14, 4, s{sA}")
        a(f"s_lshl_b32 s{sA}, s{sXG}, 3\ns_add_u32 s{sA}, s{sA}, s{sRO}\ns_lshl_b32 s{sA}, s{sA}, 2\ns_add_u32 s{sA}, s{sA}, s{sQ4}\ns_lshl_b32 s{sA}, s{sA}, 13")
        a(f"s_bfe_u32 s{sB}, s{sJ}, 0x30001\ns_lshl_b32 s{sB}, s{sB}, 7\ns_add_u32 s{sA}, s{sA}, s{sB}")
        a(f"v_lshlrev_b32 v15, 10, v10\nv_lshl_add_u32 v15, v11, 4, v15\nv_add_u32 v15, s{sA}, v15\nv_xor_b32 v10, 0x8000, v15")
        a(f"s_add_u32 s{sB}, s{sB}, {L_MOD + 5 * 1024}\nv_lshl_add_u32 v9, v11, 4, s{sB}\nds_read_b128 v[56:59], v9")
        a(f"s_lshl_b32 s{sA}, s{sXG}, 3\ns_add_u32 s{sA}, s{sA}, s{sW}\ns_lshl_b32 s{sA}, s{sA}, 7\ns_add_u32 s{sF}, s{sA}, {FL5}")
        a(f"s_lshl_b32 s{sA}, s{sJ}, 2\nv_mov_b32 v60, s{sA}\nv_xor_b32 v8, 4, v60\nv_mov_b32 v61, s{sT}\ns_waitcnt lgkmcnt(0)")
        self.unpack8(GB, 56)
        for e in range(8):
            a(f"v_mul_f32 v{GB + e}, {f2h(ALPHA ** -2)}, v{GB + e}")
        NF, NS = self.o["fin_at"], None
        for n in range(28):
            i, f = divmod(n, 7)
            wait(n)
            if NS is not None and "flag" not in vm and vm.index(n) > NS:
                a("s_mov_b64 exec, 1")
                self.local_stores([f"buffer_store_dword v61, v60, {srd(rWS)}, s{sF} offen"])
                a("s_mov_b64 exec, -1")
                vm.append("flag")
            for nt in range(4):
                acc = vr(ACC + ((i & 1) * 4 + nt) * 4, 4)
                c = "0" if f == 0 else acc
                a(f"v_mfma_f32_16x16x32_bf16 {acc}, {vr(self.WD + (f * 4 + nt) * 4, 4)}, {vr(HB + (n % RING) * 4, 4)}, {c}")
                if nt in (0, 2) and nxt < 28 and nxt < n + RING:
                    load(nxt)
                    nxt += 1
                if i >= 1 and f in (1, 2) and nt in (1, 3):
                    dump(i - 1, 2 * (f - 1) + (nt >> 1))
            if n == 6:
                a("s_barrier")
            if n == self.o["wb_at"]:
                lw = a.label("nwb")
                a(f"s_lshl_b32 s{sA}, s{sJ}, 3\ns_add_u32 s{sA}, s{sA}, s{sW}\ns_cmp_lg_u32 s{sA}, 255\ns_cbranch_scc1 {lw}\nbuffer_wbl2 sc1\n{lw}:")
            if n == 8:
                a(f"global_load_dwordx4 v[2:5], v10, {sp(sOUT)} sc1")
                vm.append("x1")
            if n == NF:
                a("s_waitcnt lgkmcnt(0)\ns_barrier")
                finalise(0, "x1")
                self.local_stores([f"global_store_dwordx4 v10, v[56:59], {sp(sOUT)}"])
                vm.append("t")
                NS = len(vm) - 1
            elif f == 5:
                a("s_waitcnt lgkmcnt(0)")
        assert "flag" in vm
        self.stamp()
        for nt in range(4):
            dump(3, nt)
        self.flag_poll(FL5, sW, 8)
        a(f"global_load_dwordx4 v[2:5], v15, {sp(sOUT)} sc1")
        vm.append("x2")
        a("s_waitcnt lgkmcnt(0)\ns_barrier")
        finalise(1, "x2")
        a(f"global_store_dwordx4 v15, v[56:59], {sp(sOUT)}" + (" sc1" if self.o["out_sc1"] else ""))
        if self.stamps:
            a("s_waitcnt vmcnt(0)")
        self.stamp()

    def build(self):
        a = self.a
        done = False
        for name, fn in (("p0", self.phase0), ("conv", self.conv), ("p2", self.p2), ("g1", self.gemm1), ("g2", self.gemm2)):
            fn()
            if self.maybe_stop(name):
                done = True
                break
        if not done:
            self.end()
        a("L_exit:\nL_last:\ns_endpgm")
        ref = open(f"cdna_kernels/{NAME}.s.ref").read().split("\n")
        head = [ln for ln in ref if ln.startswith(";") and "@launch" not in ln and "Override" not in ln and "grid=ceil" not in ln]
        txt = "\n".join(head) + f"\n; @launch grid=(256,1,1) block=(512,1,1) lds={LDS_BYTES}\n"
        txt += f'.amdgcn_target "amdgcn-amd-amdhsa--gfx950"\n.text\n.globl {NAME}_kernel\n.p2align 8\n.type {NAME}_kernel,@function\n{NAME}_kernel:\n'
        txt += a.finish()
        txt += f""".section .rodata,"a"
.p2align 6
.amdhsa_kernel {NAME}_kernel
  .amdhsa_next_free_vgpr 256
  .amdhsa_next_free_sgpr 102
  .amdhsa_accum_offset 256
  .amdhsa_group_segment_fixed_size 0
  .amdhsa_kernarg_size 120
  .amdhsa_user_sgpr_count 2
  .amdhsa_user_sgpr_kernarg_segment_ptr 1
  .amdhsa_system_sgpr_workgroup_id_x 1
  .amdhsa_float_denorm_mode_32 3
.end_amdhsa_kernel
"""
        return txt


if __name__ == "__main__":
    import argparse
    ap = argparse.ArgumentParser()
    ap.add_argument("out")
    ap.add_argument("--stop")
    ap.add_argument("--stamps", action="store_true")
    ap.add_argument("--slow", action="store_true")
    ap.add_argument("--opt", default="")
    o = ap.parse_args()
    opt = eval(f"dict({o.opt})")
    open(o.out, "w").write(Gen(o.stop, o.stamps, o.slow, **opt).build())
```

```python
import struct
import sys
from asmlib import Asm

NAME = "adaLN_cond__ssm_conv_h3__glu_gated_geglu__prompt"

FL1, FL3, FL4, FL5 = 0x4000, 0x6000, 0x8000, 0xA000
MODF = 0x2000
MODP = 0x10000
R1 = 0x100000
Z = 0x300000
ZG = 0xE0000
STAMP = 0xA00000
WS_BYTES = 0x1000000

L_G = 0
L_U = 65536
L_KT = 0
L_VT = 9 * 1040
L_KVR = 114688
L_PART = 131072
L_MOD = 131072 + 8448
LDS_BYTES = 163840
KCH = 8320
KE, KO = 32, 32 + 4096 + 64
SPIN = 1 << 16
C1 = 1.5957691216057308 * 1.4426950408889634
ALPHA = (C1 * 0.044715) ** (1.0 / 3.0)


def f2h(x):
    return "0x%08x" % struct.unpack("<I", struct.pack("<f", x))[0]


sQ, sK, sV, sSH, sSK, sSD, sWG, sWU, sWD, sC, sWM, sOUT, sDBG, sWS = (
    4, 6, 8, 10, 12, 14, 18, 20, 22, 24, 26, 28, 30, 32)
sXG, sJ, sW, sP, sT, sFAST, sID = 34, 35, 36, 37, 38, 40, 41
sDA, sDB = 42, 43
rK, rV, rG, rU, rD, rWS, rSK = 44, 48, 52, 56, 60, 64, 68
sA, sB, sCn, sE, sF, sGt = 72, 73, 74, 75, 76, 77
sM = 78
sWP, sWO = 100, 101
sDS, sDL, sDM, sDT = 16, 17, 98, 99
sKW = 3
sST = 80


def sp(n):
    return f"s[{n}:{n + 1}]"


def srd(n):
    return f"s[{n}:{n + 3}]"


def vr(n, k):
    return f"v[{n}:{n + k - 1}]"


DEFAULTS = dict(nb1=2, nb2=1, nb3=1, nb4=0, sp_lines=7, sp_rot=1, wk_lines=0, wk_at=(7, 5),
                h_sched=((4, 4, 4, 4, 4, 2), (4, 4, 4, 3)), w_own=0, w_sched=((0, 0, 0, 0, 0, 4, 4, 4, 4), ()), bars=((7, 7), (11, 10)), top_at=(9, 8), wd_slots=(1, 4, 7),
                end_bar=(2, 0), scalar_q=(2, 0), nt_from=8, hh_sc1=0, nt0=' nt', d0=1, ahead=4, ring=5, r0=3, fin_at=16, poll_at=25,
                spare=('z', 'o', 'y'))


class Gen:
    def __init__(self, stop=None, stamps=False, force_slow=False, **opt):
        self.o = dict(DEFAULTS)
        self.o.update(opt)
        self.a = Asm()
        self.stop = stop
        self.stamps = stamps
        self.force_slow = force_slow
        self.nst = 0
        self.nb = 0
        self.wd_done = 0

    def stamp(self):
        if not self.stamps:
            return
        a = self.a
        a(f"s_memrealtime {sp(sM)}")
        a("s_waitcnt lgkmcnt(0)")
        a(f"s_mov_b32 s{sST + self.nst}, s{sM}")
        self.nst += 1

    def mk_srd(self, r, p, nbytes):
        self.a(f"s_mov_b64 {sp(r)}, {sp(p)}\ns_mov_b32 s{r + 2}, {nbytes}\ns_mov_b32 s{r + 3}, 0x20000")

    def local_stores(self, lines):
        a = self.a
        ls, le = a.label("slow"), a.label("join")
        a(f"s_cmp_eq_u32 s{sFAST}, 0\ns_cbranch_scc1 {ls}")
        for ln in lines:
            a(ln)
        a(f"s_branch {le}\n{ls}:")
        for ln in lines:
            a(ln + " sc1")
        a(f"{le}:")

    def flag_store(self, fl, sline, sword):
        a = self.a
        a(f"s_lshl_b32 s{sA}, s{sXG}, 3\ns_add_u32 s{sA}, s{sA}, s{sline}\ns_lshl_b32 s{sA}, s{sA}, 5\ns_add_u32 s{sA}, s{sA}, s{sword}")
        a(f"s_lshl_b32 s{sA}, s{sA}, 2\ns_add_u32 s{sA}, s{sA}, {fl}\nv_mov_b32 v8, 0\nv_mov_b32 v9, s{sT}")
        a("s_waitcnt vmcnt(0)\ns_mov_b64 exec, 1")
        self.local_stores([f"buffer_store_dword v9, v8, {srd(rWS)}, s{sA} offen"])
        a("s_mov_b64 exec, -1")

    def flag_poll(self, fl, sline, voff):
        a = self.a
        lp, ld = a.label("poll"), a.label("seen")
        a(f"s_lshl_b32 s{sA}, s{sXG}, 3\ns_add_u32 s{sA}, s{sA}, s{sline}\ns_lshl_b32 s{sA}, s{sA}, 7\ns_add_u32 s{sA}, s{sA}, {fl}")
        a(f"s_mov_b32 s{sCn}, 0\n{lp}:")
        a(f"buffer_load_dword v9, v{voff}, {srd(rWS)}, s{sA} offen sc1\ns_add_u32 s{sCn}, s{sCn}, 1\ns_waitcnt vmcnt(0)")
        a(f"v_cmp_ne_u32 vcc, s{sT}, v9\ns_cbranch_vccz {ld}")
        a(f"s_cmp_lt_u32 s{sCn}, {SPIN}\ns_cbranch_scc1 {lp}\n{ld}:")

    def tagged_loads(self, loads, behind=None):
        a = self.a
        lp, ld, lc = a.label("tag"), a.label("tagok"), a.label("tagchk")
        if behind:
            for ins, _, _ in loads:
                a(ins)
            n = behind()
            a(f"s_mov_b32 s{sCn}, 0\ns_waitcnt vmcnt({n})\ns_branch {lc}")
        else:
            a(f"s_mov_b32 s{sCn}, 0")
        a(f"{lp}:")
        for ins, _, _ in loads:
            a(ins)
        a(f"s_add_u32 s{sCn}, s{sCn}, 1\ns_waitcnt vmcnt(0)\n{lc}:")
        for i, (_, tg, wide) in enumerate(loads):
            dst = "vcc" if i == 0 else sp(sM)
            if wide:
                a(f"v_cmp_ne_u64 {dst}, {sp(sT)}, {tg}")
            else:
                a(f"v_cmp_ne_u32 {dst}, s{sT}, {tg}")
            if i:
                a(f"s_or_b64 vcc, vcc, {sp(sM)}")
        a(f"s_cmp_eq_u64 vcc, 0\ns_cbranch_scc1 {ld}")
        a(f"s_sleep 2\ns_cmp_lt_u32 s{sCn}, {SPIN}\ns_cbranch_scc1 {lp}\n{ld}:")

    def wave_sum(self, regs, tmp):
        a = self.a
        for sh in (8, 4, 2, 1):
            for r in regs:
                a(f"v_add_f32_dpp v{r}, v{r}, v{r} row_ror:{sh} row_mask:0xf bank_mask:0xf")
        for op in ("v_permlane16_swap_b32", "v_permlane32_swap_b32"):
            for i, r in enumerate(regs):
                a(f"v_mov_b32 v{tmp + i}, v{r}")
            for i, r in enumerate(regs):
                a(f"{op} v{r}, v{tmp + i}")
            for i, r in enumerate(regs):
                a(f"v_add_f32 v{r}, v{r}, v{tmp + i}")

    def unpack8(self, dst, src):
        for i in range(4):
            self.a(f"v_lshlrev_b32 v{dst + 2 * i}, 16, v{src + i}\nv_and_b32 v{dst + 2 * i + 1}, 0xffff0000, v{src + i}")

    def ln_stats(self, x, mu, rs, tmp):
        a = self.a
        a(f"v_pk_add_f32 {vr(tmp, 2)}, {vr(x, 2)}, {vr(x + 2, 2)}")
        a(f"v_pk_mul_f32 {vr(tmp + 2, 2)}, {vr(x, 2)}, {vr(x, 2)}")
        a(f"v_pk_add_f32 {vr(tmp, 2)}, {vr(tmp, 2)}, {vr(x + 4, 2)}")
        a(f"v_pk_fma_f32 {vr(tmp + 2, 2)}, {vr(x + 2, 2)}, {vr(x + 2, 2)}, {vr(tmp + 2, 2)}")
        a(f"v_pk_add_f32 {vr(tmp, 2)}, {vr(tmp, 2)}, {vr(x + 6, 2)}")
        a(f"v_pk_fma_f32 {vr(tmp + 2, 2)}, {vr(x + 4, 2)}, {vr(x + 4, 2)}, {vr(tmp + 2, 2)}")
        a(f"v_add_f32 v{mu}, v{tmp}, v{tmp + 1}")
        a(f"v_pk_fma_f32 {vr(tmp + 2, 2)}, {vr(x + 6, 2)}, {vr(x + 6, 2)}, {vr(tmp + 2, 2)}")
        a(f"v_add_f32 v{rs}, v{tmp + 2}, v{tmp + 3}")
        self.wave_sum([mu, rs], tmp)
        a(f"v_mul_f32 v{mu}, 0x3b000000, v{mu}")
        a(f"v_mul_f32 v{rs}, 0x3b000000, v{rs}")
        a(f"v_fma_f32 v{rs}, -v{mu}, v{mu}, v{rs}")
        a(f"v_max_f32 v{rs}, 0, v{rs}")
        a(f"v_add_f32 v{rs}, 0x3727c5ac, v{rs}")
        a(f"v_rsq_f32 v{rs}, v{rs}")

    def w1_setup(self):
        a = self.a
        self.mk_srd(rG, sWG, 512 * 3584)
        self.mk_srd(rU, sWU, 512 * 3584)
        a(f"s_lshl_b32 s{sWP}, s{sW}, 10\ns_and_b32 s{sA}, s{sW}, 1\ns_lshl_b32 s{sA}, s{sA}, 2\nv_bfe_u32 v8, v1, 4, 1\nv_lshl_add_u32 v8, v8, 1, s{sA}")
        a(f"v_and_b32 v9, 7, v1\nv_xor_b32 v8, v8, v9\nv_lshrrev_b32 v9, 3, v1\nv_mul_u32_u24 v9, 3584, v9\nv_lshl_add_u32 v14, v8, 4, v9")
        a(f"s_lshl_b32 s{sB}, s{sJ}, 7\ns_mul_i32 s{sA}, s{sW}, {8 * 3584}\ns_add_u32 s{sB}, s{sB}, s{sA}\nv_add_u32 v14, s{sB}, v14")

    def w1_block(self, b, both=0, v2=13):
        a = self.a
        a(f"s_add_u32 s{sWO}, s{sXG}, {b}\ns_and_b32 s{sWO}, s{sWO}, 7\ns_mul_i32 s{sWO}, s{sWO}, {64 * 3584}")
        for r, lds in ((rG, L_G), (rU, L_U)):
            if both:
                a(f"s_add_u32 m0, s{sWP}, {(lds + b * 8192 + both * 4096) & 0xffffffff}")
                a(f"buffer_load_dwordx4 v{v2}, {srd(r)}, s{sWO} offen{' nt' if b >= self.o['nt_from'] else ''} lds")
            a(f"s_add_u32 m0, s{sWP}, {lds + b * 8192}")
            a(f"buffer_load_dwordx4 v14, {srd(r)}, s{sWO} offen{' nt' if b >= self.o['nt_from'] else ''} lds")

    def w1_blocks(self, n, both=False):
        a = self.a
        if n == 0:
            return 0
        ls, le = a.label("sp"), a.label("spe")
        a(f"s_cmp_ge_u32 s{sJ}, 28\ns_cbranch_scc1 {ls}")
        for b in range(self.nb, self.nb + n):
            self.w1_block(b, -1 if both else 0)
        a(f"s_branch {le}\n{ls}:")
        cnt = n * (4 if both else 2)
        per = self.o["sp_lines"]
        a(f"v_min_u32 v8, {per - 1}, v1\ns_sub_u32 s{sA}, s{sJ}, 28\ns_mul_i32 s{sA}, s{sA}, {16 * per * n}\ns_and_b32 s{sB}, s{sW}, {3 if both else 7}")
        a(f"s_mul_i32 s{sB}, s{sB}, {per * cnt}\ns_add_u32 s{sA}, s{sA}, s{sB}\ns_add_u32 s{sA}, s{sA}, {self.wd_done}")
        if self.o["sp_rot"]:
            a(f"s_mul_i32 s{sB}, s{sXG}, 1792\ns_add_u32 s{sA}, s{sA}, s{sB}")
            assert self.wd_done + 64 * per * n <= 1792
        a(f"v_add_lshl_u32 v8, v8, s{sA}, 7")
        for i in range(cnt):
            a(f"global_load_dword v143, v8, {sp(sWD)}")
            if i < cnt - 1:
                a(f"v_add_u32 v8, {128 * per}, v8")
        a(f"{le}:")
        self.nb += n
        self.wd_done += 64 * per * n
        assert self.wd_done <= 14336
        return cnt

    def end(self):
        a = self.a
        if self.stamps:
            l = a.label("nost")
            a(f"s_and_b32 s{sA}, s{sW}, 3\ns_cmp_lg_u32 s{sA}, 0\ns_cbranch_scc1 {l}")
            a(f"s_lshl_b32 s{sA}, s2, 1\ns_lshr_b32 s{sB}, s{sW}, 2\ns_add_u32 s{sA}, s{sA}, s{sB}\ns_lshl_b32 s{sA}, s{sA}, 7\ns_add_u32 s{sA}, s{sA}, {STAMP}")
            a("v_mov_b32 v8, 0\ns_mov_b64 exec, 1")
            for i in range(self.nst):
                a(f"v_mov_b32 v9, s{sST + i}\nbuffer_store_dword v9, v8, {srd(rWS)}, s{sA} offen offset:{4 * i}")
            a(f"v_mov_b32 v9, s{sFAST}\nbuffer_store_dword v9, v8, {srd(rWS)}, s{sA} offen offset:124")
            a(f"{l}:")
        a("s_endpgm")

    def maybe_stop(self, name):
        if self.stop == name:
            self.a("s_waitcnt vmcnt(0) lgkmcnt(0)")
            self.bump_epoch()
            self.end()
            return True
        return False

    def bump_epoch(self):
        a = self.a
        l = a.label("noep")
        a(f"s_or_b32 s{sA}, s2, s{sW}\ns_cmp_lg_u32 s{sA}, 0\ns_cbranch_scc1 {l}")
        a(f"v_mov_b32 v8, 0\nv_mov_b32 v9, s{sT}\ns_mov_b64 exec, 1")
        a(f"buffer_store_dword v9, v8, {srd(rWS)}, 0 offen sc1\ns_mov_b64 exec, -1\n{l}:")

    def phase0(self):
        a = self.a
        a("s_load_dwordx16 s[4:19], s[0:1], 0\ns_load_dwordx8 s[20:27], s[0:1], 64")
        a("s_load_dwordx4 s[28:31], s[0:1], 96\ns_load_dwordx2 s[32:33], s[0:1], 112")
        a("s_cmp_ge_u32 s2, 256\ns_cbranch_scc1 L_exit")
        a("v_lshrrev_b32 v8, 6, v0\nv_and_b32 v1, 63, v0")
        a(f"s_and_b32 s{sXG}, s2, 7\ns_lshr_b32 s{sJ}, s2, 3\nv_readfirstlane_b32 s{sW}, v8")
        a(f"s_lshl_b32 s{sP}, s{sXG}, 5\ns_add_u32 s{sP}, s{sP}, s{sJ}")
        a(f"s_getreg_b32 s{sID}, hwreg(HW_REG_XCC_ID, 0, 4)\ns_add_u32 s{sID}, s{sID}, 1")
        a("v_lshrrev_b32 v10, 3, v1\nv_and_b32 v11, 7, v1\nv_lshlrev_b32 v12, 10, v10\nv_lshl_add_u32 v12, v11, 4, v12")
        a(f"s_lshl_b32 s{sE}, s{sJ}, 3\ns_add_u32 s{sE}, s{sE}, s{sW}\ns_lshl_b32 s{sE}, s{sE}, 13\ns_lshl_b32 s{sA}, s{sXG}, 7\ns_add_u32 s{sE}, s{sE}, s{sA}")
        a(f"s_mul_i32 s{sF}, s{sW}, 1040")
        a("s_waitcnt lgkmcnt(0)")
        self.stamp()
        self.mk_srd(rK, sK, 2097152)
        self.mk_srd(rV, sV, 2097152)
        a(f"s_add_u32 m0, s{sF}, {L_KT + 1040}\nbuffer_load_dwordx4 v12, {srd(rK)}, s{sE} offen{self.o['nt0']} lds")
        a(f"s_add_u32 m0, s{sF}, {L_VT}\nbuffer_load_dwordx4 v12, {srd(rV)}, s{sE} offen{self.o['nt0']} lds")
        a(f"s_load_dword s{sT}, {sp(sWS)}, 0")
        a(f"s_lshl_b32 s{sA}, s{sP}, 2\ns_load_dword s{sDA}, {sp(sSD)}, s{sA}")
        l0 = a.label("nw0")
        a(f"s_cmp_lg_u32 s{sW}, 0\ns_cbranch_scc1 {l0}")
        a(f"s_sub_u32 s{sA}, s{sE}, 8192\nv_add_u32 v13, s{sA}, v12\ns_mov_b32 m0, {L_KT}")
        a(f"v_mov_b32 v8, s{sP}\nv_mov_b32 v9, s{sID}")
        a(f"s_mov_b32 exec_lo, 0\ns_mov_b32 exec_hi, 0xffffff00\nbuffer_load_dwordx4 v13, {srd(rK)}, 0 offen lds")
        a(f"s_mov_b64 exec, 1\nglobal_store_byte v8, v9, {sp(sDBG)}\ns_mov_b64 exec, -1\n{l0}:")
        self.mk_srd(rSK, sSK, 2097152)
        self.mk_srd(rWS, sWS, WS_BYTES)
        a(f"s_lshl_b32 s{sA}, s{sXG}, 3\ns_add_u32 s{sA}, s{sA}, s{sW}\ns_lshl_b32 s{sA}, s{sA}, 6\nv_lshl_add_u32 v13, v10, 3, s{sA}")
        a(f"s_lshl_b32 s{sA}, s{sXG}, 5\nv_and_b32 v14, 31, v1\nv_add_u32 v14, s{sA}, v14")
        a(f"s_lshl_b32 s{sA}, s{sP}, 13\nv_lshl_add_u32 v22, v0, 4, s{sA}\nv_add_u32 v23, -4, v22")
        a(f"s_lshl_b32 s{sA}, s{sP}, 3\ns_add_u32 s{sA}, s{sA}, s{sW}\ns_lshl_b32 s{sA}, s{sA}, 10\nv_lshl_add_u32 v15, v1, 4, s{sA}")
        a("s_barrier")
        a(f"global_load_dwordx2 v[30:31], v13, {sp(sSH)}")
        a(f"buffer_load_dwordx4 v[16:19], v22, {srd(rSK)}, 0 offen\nbuffer_load_dword v20, v23, {srd(rSK)}, 0 offen")
        lm, lj = a.label("wm"), a.label("wj")
        a(f"s_cmp_ge_u32 s{sW}, 2\ns_cbranch_scc1 {lm}")
        a(f"s_getpc_b64 {sp(sM)}\nL_pc:\ns_lshl_b32 s{sA}, s{sJ}, 7\nv_lshl_add_u32 v13, v11, 12, s{sA}\nv_min_u32 v13, L_last-L_pc, v13\nglobal_load_dword v82, v13, {sp(sM)}")
        a(f"s_lshl_b32 s{sA}, s{sP}, 13\ns_add_u32 s{sA}, s{sA}, {R1}\ns_mul_i32 s{sB}, s{sP}, 3072\ns_add_u32 s{sB}, s{sB}, {MODP}")
        a(f"s_cmp_eq_u32 s{sW}, 0\ns_cselect_b32 s{sA}, s{sA}, s{sB}\ns_cselect_b32 s{sB}, 63, 23\nv_min_u32 v13, s{sB}, v1\nv_lshlrev_b32 v13, 7, v13")
        a(f"buffer_load_dword v80, v13, {srd(rWS)}, s{sA} offen sc1")
        a(f"s_lshl_b32 s{sA}, s{sXG}, 3\ns_and_b32 s{sB}, s{sJ}, 7\ns_add_u32 s{sA}, s{sA}, s{sB}\ns_lshl_b32 s{sA}, s{sA}, 7")
        a(f"s_lshr_b32 s{sB}, s{sJ}, 3\ns_lshl_b32 s{sB}, s{sB}, 13\ns_add_u32 s{sA}, s{sA}, s{sB}\ns_add_u32 s{sA}, s{sA}, {FL1}\nv_mov_b32 v13, 0")
        a(f"buffer_load_dword v81, v13, {srd(rWS)}, s{sA} offen sc1\nbuffer_load_dword v83, v13, {srd(rWS)}, s{sA} offen sc1")
        a(f"s_branch {lj}\n{lm}:")
        a(f"s_lshl_b32 s{sA}, s{sJ}, 5\nv_lshl_add_u32 v13, v10, 1, s{sA}")
        a(f"global_load_ushort v80, v13, {sp(sC)}\nglobal_load_ushort v81, v13, {sp(sC)} offset:16")
        a(f"s_sub_u32 s{sA}, s{sW}, 2\ns_lshl_b32 s{sA}, s{sA}, 10\ns_lshl_b32 s{sB}, s{sXG}, 7\ns_add_u32 s{sA}, s{sA}, s{sB}")
        a(f"s_mul_i32 s{sB}, s{sJ}, {16 * 6144}\ns_add_u32 s{sA}, s{sA}, s{sB}")
        a(f"v_mul_u32_u24 v13, 6144, v10\nv_lshl_add_u32 v13, v11, 4, v13\nv_add_u32 v13, s{sA}, v13\nv_add_u32 v22, {8 * 6144}, v13")
        a(f"global_load_dwordx4 v[72:75], v13, {sp(sWM)}{self.o['nt0']}\nglobal_load_dwordx4 v[76:79], v22, {sp(sWM)}{self.o['nt0']}")
        a(f"{lj}:")
        a("v_mov_b32 v24, 0\nv_mov_b32 v25, 0\nv_mov_b32 v26, 0\nv_mov_b32 v27, 0")
        lz = a.label("nz")
        a(f"s_cmp_lg_u32 s{sW}, 1\ns_cbranch_scc1 {lz}")
        a(f"v_lshrrev_b32 v8, 5, v1\nv_and_b32 v9, 31, v1\nv_mul_u32_u24 v8, 4608, v8\nv_lshl_add_u32 v8, v9, 4, v8\nv_add_u32 v8, {L_KVR + 4096}, v8")
        a("ds_write_b128 v8, v[24:27]")
        a(f"v_and_b32 v8, 1, v1\nv_bfe_u32 v9, v1, 1, 1\nv_lshlrev_b32 v8, 4, v8\nv_mul_u32_u24 v9, {KO - KE}, v9\nv_add_u32 v8, v8, v9")
        a(f"v_bfe_u32 v9, v1, 2, 1\nv_mul_u32_u24 v9, {KCH}, v9\nv_add3_u32 v8, v8, v9, 0\nv_add_u32 v8, {L_PART}, v8")
        a(f"ds_write_b128 v8, v[24:27]\n{lz}:")
        for i in range(19):
            a(f"v_mov_b32 v{32 + i}, 0")
        a(f"s_lshl_b32 s{sA}, s{sW}, 4\nv_mul_u32_u24 v8, 1040, v11\nv_lshl_add_u32 v8, v10, 1, v8\nv_add_u32 v8, s{sA}, v8")
        a("s_waitcnt vmcnt(7) lgkmcnt(0)")
        a(f"s_mul_i32 s{sT}, s{sT}, 0x9E3779B1\ns_add_u32 s{sT}, s{sT}, 0x7F4A7C15\ns_mul_i32 s{sT + 1}, s{sT}, 0x85EBCA6B\ns_xor_b32 s{sT + 1}, s{sT + 1}, 0x5BD1E995")
        a(f"s_and_b32 s{sDB}, s{sDA}, 0xffff0000\ns_lshl_b32 s{sDA}, s{sDA}, 16")
        a("s_barrier")
        self.stamp()
        a(f"global_load_ubyte v21, v14, {sp(sDBG)} sc1")
        for i in range(3):
            a(f"ds_read_u16_d16_hi v{32 + i}, v8 offset:{L_KT + (5 + i) * 128}")
        for i in range(8):
            a(f"ds_read_u16_d16_hi v{35 + i}, v8 offset:{L_KT + 1040 + i * 128}")
        a("s_waitcnt vmcnt(7)")
        a("v_lshlrev_b32 v28, 16, v30\nv_and_b32 v29, 0xffff0000, v30\nv_lshlrev_b32 v30, 16, v31\nv_and_b32 v31, 0xffff0000, v31")
        a("s_waitcnt lgkmcnt(7)")
        for i in range(8):
            a(f"ds_read_u16_d16_hi v{43 + i}, v8 offset:{L_VT + i * 128}")
        a("s_waitcnt lgkmcnt(8)")
        for i in range(8):
            a(f"v_mul_f32 v{52 + i}, v28, v{35 + i}")
        for jj in (1, 2, 3):
            for i in range(8):
                a(f"v_fmac_f32 v{52 + i}, v{28 + jj}, v{35 + i - jj}")
        a("s_waitcnt lgkmcnt(0)")
        for i in range(8):
            a(f"v_mul_f32 v{52 + i}, v{52 + i}, v{43 + i}")
        for i in range(4):
            a(f"v_cvt_pk_bf16_f32 v{60 + i}, v{59 - 2 * i}, v{58 - 2 * i}")
        a(f"v_lshlrev_b32 v12, 12, v10\nv_lshlrev_b32 v9, 4, v11\nv_sub_u32 v12, v12, v9\nv_add_u32 v12, 112, v12")
        a(f"s_lshl_b32 s{sA}, s{sXG}, 3\ns_add_u32 s{sA}, s{sA}, s{sW}\ns_lshl_b32 s{sA}, s{sA}, 15\ns_lshl_b32 s{sB}, s{sJ}, 7")
        a(f"s_sub_u32 s{sA}, s{sA}, s{sB}\ns_add_u32 s{sE}, s{sA}, {R1 + 4096 - 128}")
        a("v_and_b32 v8, 255, v0\nv_cmp_ne_u32 vcc, 0, v8\nv_lshrrev_b32 v9, 8, v0")
        a(f"v_mul_u32_u24 v9, {KCH}, v9\nv_lshl_add_u32 v8, v8, 4, v9\nv_add_u32 v8, {L_PART}, v8")
        a("s_waitcnt vmcnt(5)\nv_cndmask_b32 v20, 0, v20, vcc")
        a("v_alignbit_b32 v25, v17, v16, 16\nv_alignbit_b32 v26, v18, v17, 16\nv_alignbit_b32 v27, v19, v18, 16\nv_alignbit_b32 v24, v16, v20, 16")
        a(f"ds_write_b128 v8, v[16:19] offset:{KE}\nds_write_b128 v8, v[24:27] offset:{KO}")
        a("s_waitcnt lgkmcnt(0)\ns_barrier")
        la = a.label("na")
        a(f"s_cmp_ge_u32 s{sW}, 4\ns_cbranch_scc1 {la}")
        a(f"v_bfe_u32 v8, v1, 1, 3\nv_lshrrev_b32 v9, 4, v1\nv_lshl_add_u32 v8, v9, 2, v8\nv_lshlrev_b32 v8, 2, v8")
        a(f"v_and_b32 v9, 1, v1\nv_xor_b32 v9, 1, v9\nv_mul_u32_u24 v9, {KO - KE}, v9\nv_add_u32 v8, v8, v9")
        a(f"s_lshr_b32 s{sA}, s{sW}, 1\ns_mul_i32 s{sA}, s{sA}, {KCH}\ns_and_b32 s{sB}, s{sW}, 1\ns_lshl_b32 s{sB}, s{sB}, 8")
        a(f"s_add_u32 s{sA}, s{sA}, s{sB}\ns_add_u32 s{sA}, s{sA}, {L_PART + KE - 28}\nv_add_u32 v8, s{sA}, v8")
        for a2 in range(4):
            for aa in range(2):
                for rho in range(4):
                    d = 128 + (rho * 8 + a2 * 2 + aa) * 4
                    o = aa * 128 + rho * 16
                    a(f"ds_read2_b32 {vr(d, 2)}, v8 offset0:{o} offset1:{o + 1}")
                    a(f"ds_read2_b32 {vr(d + 2, 2)}, v8 offset0:{o + 2} offset1:{o + 3}")
            if a2 < 3:
                a("v_add_u32 v8, 1024, v8")
        a(f"{la}:")
        lp, ld = a.label("id"), a.label("iddone")
        a(f"s_mov_b32 s{sFAST}, 0\ns_mov_b32 s{sCn}, 0")
        if not self.force_slow:
            a(f"s_waitcnt vmcnt(0)\n{lp}:\nv_cmp_ne_u32 vcc, s{sID}, v21\ns_cmp_eq_u64 vcc, 0\ns_cselect_b32 s{sFAST}, 1, 0\ns_cbranch_scc1 {ld}")
            a(f"s_add_u32 s{sCn}, s{sCn}, 1\ns_cmp_ge_u32 s{sCn}, 6\ns_cbranch_scc1 {ld}")
            a(f"global_load_ubyte v21, v14, {sp(sDBG)} sc1\ns_waitcnt vmcnt(0)\ns_branch {lp}\n{ld}:")
        self.local_stores([f"buffer_store_dwordx4 v[60:63], v12, {srd(rWS)}, s{sE} offen"])
        self.stamp()
        self.flag_store(FL1, sW, sJ)
        self.stamp()
        lm2 = a.label("nm")
        a(f"s_cmp_lt_u32 s{sW}, 2\ns_cbranch_scc1 {lm2}")
        for r in (80, 81):
            a(f"v_lshlrev_b32 v{r}, 16, v{r}\nv_mul_f32 v8, 0xbfb8aa3b, v{r}\nv_exp_f32 v8, v8\nv_add_f32 v8, 1.0, v8\nv_rcp_f32 v8, v8")
            a(f"v_mul_f32 v{r}, v{r}, v8\nv_cvt_pk_bf16_f32 v{r}, v{r}, v{r}\nv_lshlrev_b32 v{r}, 16, v{r}")
        self.unpack8(32, 72)
        self.unpack8(40, 76)
        for e in range(8):
            a(f"v_mul_f32 v{32 + e}, v80, v{32 + e}")
        for e in range(8):
            a(f"v_fmac_f32 v{32 + e}, v81, v{40 + e}")
        for e in range(4):
            a(f"v_permlane32_swap_b32 v{32 + e}, v{36 + e}")
        for e in range(4):
            a(f"v_add_f32 v{32 + e}, v{32 + e}, v{36 + e}")
        for e in range(2):
            a(f"v_permlane16_swap_b32 v{32 + e}, v{34 + e}")
        for e in range(2):
            a(f"v_add_f32 v{32 + e}, v{32 + e}, v{34 + e}")
        for e in range(2):
            a(f"v_add_f32_dpp v{32 + e}, v{32 + e}, v{32 + e} row_ror:8 row_mask:0xf bank_mask:0xf")
        a(f"v_mov_b32 v34, s{sT}\nv_mov_b32 v35, s{sT + 1}")
        a("v_and_b32 v8, 7, v1\nv_lshrrev_b32 v9, 4, v1\nv_lshl_add_u32 v8, v8, 2, v9\nv_lshlrev_b32 v8, 4, v8")
        a(f"s_mul_i32 s{sA}, s{sP}, 3072\ns_lshl_b32 s{sB}, s{sW}, 9\ns_add_u32 s{sA}, s{sA}, s{sB}\ns_add_u32 s{sE}, s{sA}, {MODP - 1024}")
        a("s_mov_b32 exec_lo, 0x00ff00ff\ns_mov_b32 exec_hi, 0x00ff00ff")
        self.local_stores([f"buffer_store_dwordx4 v[32:35], v8, {srd(rWS)}, s{sE} offen"])
        a(f"s_mov_b64 exec, -1\n{lm2}:")
        a(f"s_and_b32 s{sB}, s{sW}, 3\ns_lshl_b32 s{sB}, s{sB}, 3\ns_sub_u32 s{sB}, 31, s{sB}\nv_sub_u32 v8, s{sB}, v10\nv_lshlrev_b32 v8, 2, v8")
        a(f"s_lshr_b32 s{sB}, s{sJ}, 2\nv_lshlrev_b32 v12, 4, v0\ns_lshl_b32 s{sE}, s{sP}, 13\ns_add_u32 s{sE}, s{sE}, {R1}")
        self.flag_poll(FL1, sB, 8)
        a(f"buffer_load_dwordx4 v[16:19], v12, {srd(rWS)}, s{sE} offen sc1")
        self.stamp()
        a(f"v_lshrrev_b32 v9, 8, v0\nv_lshl_add_u32 v8, v9, 9, v12\nv_add_u32 v8, {L_KVR}, v8")
        a("s_waitcnt vmcnt(0)\nds_write_b128 v8, v[16:19]\ns_waitcnt lgkmcnt(0)\ns_barrier")
        self.stamp()

    def conv(self):
        a = self.a
        lh, lj = a.label("help"), a.label("cj")
        a(f"s_cmp_ge_u32 s{sW}, 4\ns_cbranch_scc1 {lh}")
        a("v_and_b32 v9, 15, v1\nv_lshrrev_b32 v10, 4, v1\nv_lshlrev_b32 v8, 4, v10\nv_lshlrev_b32 v11, 5, v9\nv_sub_u32 v8, v8, v11")
        a(f"s_lshr_b32 s{sA}, s{sW}, 1\ns_mul_i32 s{sA}, s{sA}, 4608\ns_and_b32 s{sB}, s{sW}, 1\ns_lshl_b32 s{sB}, s{sB}, 8")
        a(f"s_add_u32 s{sA}, s{sA}, s{sB}\ns_add_u32 s{sA}, s{sA}, {L_KVR + 480}\nv_add_u32 v8, s{sA}, v8")

        def rd(rho, b):
            return f"ds_read_b128 {vr(32 + (rho & 1) * 32 + b * 4, 4)}, v8 offset:{512 * (7 - b) + 64 * rho}"

        for b in range(8):
            a(rd(0, b))
        a(f"global_load_dwordx4 v[2:5], v15, {sp(sQ)}{self.o['nt0']}")
        a(f"v_lshl_add_u32 v11, v10, 2, v9\nv_and_b32 v11, 15, v11\nv_lshl_add_u32 v11, v10, 4, v11\nv_lshlrev_b32 v11, 4, v11")
        a(f"s_lshl_b32 s{sA}, s{sW}, 13\ns_add_u32 s{sA}, s{sA}, {L_PART}\nv_add_u32 v11, s{sA}, v11")
        for rho in range(4):
            def mf(aa, b):
                t = aa + b
                c = "0" if (rho == 0 and b == 0) else vr(96 + 4 * t, 4)
                return f"v_mfma_f32_16x16x32_bf16 {vr(96 + 4 * t, 4)}, {vr(128 + (rho * 8 + aa) * 4, 4)}, {vr(32 + (rho & 1) * 32 + b * 4, 4)}, {c}"
            if rho < 3:
                n = 0
                for b in range(8):
                    if rho == 0:
                        a(f"s_waitcnt lgkmcnt({min(15, 7 - b + min(n, 8))})")
                    elif b == 0:
                        a("s_waitcnt lgkmcnt(0)")
                    for aa in range(8 - b):
                        a(mf(aa, b))
                        if aa % 2 == 1 and n < 8:
                            a(rd(rho + 1, n))
                            n += 1
                assert n == 8
            else:
                a("s_waitcnt lgkmcnt(0)")
                order = [7, 6, 5, 4, 3, 2, 1, 0]
                for idx, t in enumerate(order):
                    for b in range(t + 1):
                        a(mf(t - b, b))
                    if idx >= 2:
                        tp = order[idx - 2]
                        a(f"ds_write_b128 v11, {vr(96 + 4 * tp, 4)} offset:{1024 * tp}")
                for tp in order[-2:]:
                    a(f"ds_write_b128 v11, {vr(96 + 4 * tp, 4)} offset:{1024 * tp}")
        a(f"s_branch {lj}\n{lh}:")
        l4 = a.label("n4")
        a(f"s_cmp_lg_u32 s{sW}, 4\ns_cbranch_scc1 {l4}")
        a(f"v_and_b32 v8, 31, v1\nv_mul_u32_u24 v8, 3072, v8\nv_lshrrev_b32 v9, 5, v1\nv_mul_u32_u24 v10, 1536, v9\nv_add_u32 v8, v8, v10")
        a(f"s_mul_i32 s{sA}, s{sXG}, {32 * 3072}\ns_lshl_b32 s{sB}, s{sJ}, 4\ns_add_u32 s{sA}, s{sA}, s{sB}\ns_add_u32 s{sE}, s{sA}, {MODP}")
        self.tagged_loads([(f"buffer_load_dwordx4 {vr(32 + 4 * i, 4)}, v8, {srd(rWS)}, s{sE} offen offset:{512 * i} sc1", vr(34 + 4 * i, 2), True) for i in range(3)])
        regs = [32, 33, 36, 37, 40, 41]
        for sh in (8, 4, 2, 1):
            for r in regs:
                a(f"v_add_f32_dpp v{r}, v{r}, v{r} row_ror:{sh} row_mask:0xf bank_mask:0xf")
        for i, r in enumerate(regs):
            a(f"v_mov_b32 v{44 + i}, v{r}")
        for i, r in enumerate(regs):
            a(f"v_permlane16_swap_b32 v{r}, v{44 + i}")
        for i, r in enumerate(regs):
            a(f"v_add_f32 v{r}, v{r}, v{44 + i}")
        a(f"v_cvt_pk_bf16_f32 v32, v32, v33\nv_cvt_pk_bf16_f32 v33, v36, v37\nv_cvt_pk_bf16_f32 v34, v40, v41\nv_mov_b32 v35, s{sT}")
        a(f"v_lshlrev_b32 v8, 4, v9\ns_lshl_b32 s{sA}, s{sP}, 5\ns_add_u32 s{sA}, s{sA}, {MODF}")
        a(f"s_mov_b32 exec_lo, 1\ns_mov_b32 exec_hi, 1\nbuffer_store_dwordx4 v[32:35], v8, {srd(rWS)}, s{sA} offen sc1\ns_mov_b64 exec, -1\n{l4}:")
        a(f"global_load_dwordx4 v[2:5], v15, {sp(sQ)}{self.o['nt0']}")
        self.w1_setup()
        a(f"v_add_u32 v13, {(-32 * 3584) & 0xffffffff}, v14")
        self.w1_blocks(self.o["nb1"], True)
        a(f"{lj}:")
        a("v_lshrrev_b32 v8, 3, v1\nv_bfe_u32 v9, v1, 1, 2\nv_lshl_add_u32 v8, v9, 2, v8\nv_and_b32 v8, 15, v8\nv_lshl_add_u32 v8, v9, 4, v8")
        a(f"v_and_b32 v9, 1, v1\nv_lshl_add_u32 v8, v8, 1, v9\nv_lshlrev_b32 v8, 3, v8\ns_lshl_b32 s{sA}, s{sW}, 10\ns_add_u32 s{sA}, s{sA}, {L_PART}")
        a(f"v_add_u32 v8, s{sA}, v8\nv_xor_b32 v9, 128, v8")
        a(f"s_lshl_b32 s{sA}, s{sW}, 9\ns_sub_u32 s{sA}, {L_KVR + 4092 - 256}, s{sA}\nv_lshlrev_b32 v10, 2, v1\nv_sub_u32 v10, s{sA}, v10")
        a("s_waitcnt lgkmcnt(0)\ns_barrier")
        self.stamp()
        for h, ad in ((0, 8), (1, 9)):
            for mw in range(4):
                a(f"ds_read_b64 {vr(32 + h * 8 + mw * 2, 2)}, v{ad} offset:{8192 * mw}")
            for ch in range(2):
                a(f"ds_read_b32 v{48 + h * 2 + ch}, v10 offset:{4608 * ch + 256 * (1 - h)}")
        a(f"v_mov_b32 v62, s{sT}\nv_mov_b32 v63, s{sT + 1}\nv_mov_b32 v66, s{sT}\nv_mov_b32 v67, s{sT + 1}")
        a(f"s_mul_i32 s{sA}, s{sW}, {ZG}\ns_lshl_b32 s{sB}, s{sP}, 11\ns_add_u32 s{sA}, s{sA}, s{sB}\ns_add_u32 s{sE}, s{sA}, {Z}\nv_lshlrev_b32 v11, 4, v1")
        for h in range(2):
            a(f"s_waitcnt lgkmcnt({6 * (1 - h)})")
            for ch in range(2):
                p = 32 + h * 8 + ch * 4
                kv = 48 + h * 2 + ch
                a(f"v_pk_add_f32 {vr(p, 2)}, {vr(p, 2)}, {vr(p + 2, 2)}")
                a(f"v_and_b32 v52, 0xffff0000, v{kv}\nv_lshlrev_b32 v53, 16, v{kv}")
                a(f"v_fmac_f32 v{p}, s{sDA + ch}, v52\nv_fmac_f32 v{p + 1}, s{sDA + ch}, v53")
            p = 32 + h * 8
            a(f"v_cvt_pk_bf16_f32 v{60 + 4 * h}, v{p}, v{p + 4}\nv_cvt_pk_bf16_f32 v{61 + 4 * h}, v{p + 1}, v{p + 5}")
            a(f"buffer_store_dwordx4 {vr(60 + 4 * h, 4)}, v11, {srd(rWS)}, s{sE} offen offset:{1024 * h} sc1")
        self.stamp()

    def p2(self):
        a = self.a
        self.w1_setup()
        a(f"s_mov_b32 s{sE}, {MODF}\nv_lshlrev_b32 v10, 4, v0\ns_barrier")

        def ln1():
            n = self.w1_blocks(self.o["nb2"])
            a(f"s_waitcnt vmcnt({n + 3})")
            self.unpack8(40, 2)
            self.ln_stats(40, 6, 7, 56)
            return n

        self.tagged_loads([(f"buffer_load_dwordx4 v[28:31], v10, {srd(rWS)}, s{sE} offen sc1", "v31", False)], ln1)
        a(f"v_and_b32 v9, 1, v0\nv_mul_u32_u24 v9, 3072, v9\nv_lshrrev_b32 v8, 1, v0\nv_lshl_add_u32 v8, v8, 2, v9\nv_add_u32 v8, {L_MOD}, v8")
        for i in range(3):
            a(f"ds_write_b32 v8, v{28 + i} offset:{1024 * i}")
        self.stamp()
        a(f"v_lshrrev_b32 v8, 2, v0\nv_and_b32 v9, 3, v0\nv_lshlrev_b32 v10, 11, v8\nv_lshl_add_u32 v10, v9, 4, v10")
        a(f"s_mul_i32 s{sA}, s{sXG}, {ZG}\ns_lshl_b32 s{sB}, s{sJ}, 6\ns_add_u32 s{sA}, s{sA}, s{sB}\ns_add_u32 s{sE}, s{sA}, {Z}\ns_add_u32 s{sF}, s{sE}, {128 * 2048}")
        a(f"v_mul_u32_u24 v9, 2080, v9\nv_lshl_add_u32 v11, v8, 2, v9\nv_add_u32 v11, {L_PART}, v11")
        X, N, T1, T2, SB, CB, M = 40, 48, 56, 64, 72, 80, 96
        a("s_waitcnt lgkmcnt(0)\ns_barrier")

        def behind():
            a(f"s_lshl_b32 s{sA}, s{sP}, 13\ns_add_u32 s{sA}, s{sA}, {R1}\nv_lshlrev_b32 v9, 4, v0\nbuffer_load_dword v142, v9, {srd(rWS)}, s{sA} offen sc1")
            if self.o["nb3"]:
                a("s_barrier")
            n = self.w1_blocks(self.o["nb3"])
            a(f"v_lshlrev_b32 v9, 4, v1\nv_add_u32 v9, {L_MOD}, v9")
            for i in range(5):
                a(f"ds_read_b128 {vr(M + 4 * i, 4)}, v9 offset:{1024 * i}")
            for i in range(0, 8, 2):
                a(f"v_pk_add_f32 {vr(N + i, 2)}, {vr(X + i, 2)}, v[6:7] op_sel_hi:[1,0] neg_lo:[0,1] neg_hi:[0,1]")
            for i in range(0, 8, 2):
                a(f"v_pk_mul_f32 {vr(N + i, 2)}, {vr(N + i, 2)}, v[6:7] op_sel:[0,1] op_sel_hi:[1,1]")
            a("s_waitcnt lgkmcnt(0)")
            self.unpack8(T1, M)
            self.unpack8(T2, M + 4)
            for i in range(0, 8, 2):
                a(f"v_pk_add_f32 {vr(T1 + i, 2)}, {vr(T1 + i, 2)}, {vr(N + i, 2)}")
            for i in range(0, 8, 2):
                a(f"v_pk_fma_f32 {vr(N + i, 2)}, {vr(N + i, 2)}, {vr(T2 + i, 2)}, {vr(T1 + i, 2)}")
            self.unpack8(T1, M + 8)
            for i in range(0, 8, 2):
                a(f"v_pk_mul_f32 {vr(N + i, 2)}, {vr(N + i, 2)}, {vr(T1 + i, 2)}")
            self.unpack8(SB, M + 12)
            self.unpack8(CB, M + 16)
            a(f"v_mov_b32 v8, {f2h(ALPHA)}")
            for i in range(0, 8, 2):
                a(f"v_pk_fma_f32 {vr(CB + i, 2)}, {vr(CB + i, 2)}, v[8:9], v[8:9] op_sel_hi:[1,0,0]")
            for i in range(0, 8, 2):
                a(f"v_pk_mul_f32 {vr(SB + i, 2)}, {vr(SB + i, 2)}, v[8:9] op_sel_hi:[1,0]")
            a(f"v_lshlrev_b32 v9, 4, v1\ns_mul_i32 s{sA}, s{sW}, 1040\ns_add_u32 s{sA}, s{sA}, {L_PART}\nv_add_u32 v12, s{sA}, v9")
            a("v_lshrrev_b32 v13, 1, v1\nv_and_b32 v9, 1, v1\nv_lshlrev_b32 v13, 8, v13\nv_lshl_add_u32 v13, v9, 4, v13")
            return n + 1

        self.tagged_loads([(f"buffer_load_dwordx4 v[28:31], v10, {srd(rWS)}, s{sE} offen sc1", "v[30:31]", True),
                           (f"buffer_load_dwordx4 v[32:35], v10, {srd(rWS)}, s{sF} offen sc1", "v[34:35]", True)], behind)
        a("ds_write_b32 v11, v28\nds_write_b32 v11, v29 offset:1040\nds_write_b32 v11, v32 offset:512\nds_write_b32 v11, v33 offset:1552")
        self.stamp()
        a(f"s_lshl_b32 s{sA}, s{sP}, 13\ns_lshl_b32 s{sB}, s{sW}, 5\ns_add_u32 s{sA}, s{sA}, s{sB}\ns_add_u32 s{sE}, s{sA}, {R1}")
        a("s_waitcnt lgkmcnt(0)\ns_barrier\nds_read_b128 v[36:39], v12\ns_waitcnt lgkmcnt(0)")
        self.unpack8(T2, 36)
        for i in range(0, 8, 2):
            a(f"v_pk_fma_f32 {vr(X + i, 2)}, {vr(N + i, 2)}, {vr(T2 + i, 2)}, {vr(X + i, 2)}")
        self.ln_stats(X, 6, 7, T1)
        for i in range(0, 8, 2):
            a(f"v_pk_add_f32 {vr(N + i, 2)}, {vr(X + i, 2)}, v[6:7] op_sel_hi:[1,0] neg_lo:[0,1] neg_hi:[0,1]")
        for i in range(0, 8, 2):
            a(f"v_pk_mul_f32 {vr(CB + i, 2)}, {vr(CB + i, 2)}, v[6:7] op_sel:[0,1] op_sel_hi:[1,1]")
        for i in range(0, 8, 2):
            a(f"v_pk_fma_f32 {vr(N + i, 2)}, {vr(N + i, 2)}, {vr(CB + i, 2)}, {vr(SB + i, 2)}")
        for d, (p, q) in enumerate(((0, 1), (2, 3), (4, 5), (6, 7))):
            a(f"v_cvt_pk_bf16_f32 v{28 + d}, v{N + p}, v{N + q}")
        for i in range(4):
            a(f"v_cvt_pk_bf16_f32 v{2 + i}, v{X + 2 * i}, v{X + 2 * i + 1}")
        self.local_stores([f"buffer_store_dwordx4 v[28:31], v13, {srd(rWS)}, s{sE} offen",
                           f"global_store_dwordx4 v15, v[2:5], {sp(sOUT)}"])
        self.stamp()
        a("v_bfe_u32 v8, v1, 3, 1\nv_lshlrev_b32 v8, 13, v8\nv_and_b32 v9, 7, v1\nv_lshl_add_u32 v8, v9, 5, v8")
        a("v_lshrrev_b32 v9, 5, v1\nv_lshl_add_u32 v8, v9, 8, v8\nv_bfe_u32 v9, v1, 4, 1\nv_lshl_add_u32 v46, v9, 4, v8\nv_add_u32 v47, 16384, v46")
        a("v_lshrrev_b32 v8, 4, v1\nv_bfe_u32 v9, v1, 2, 2\nv_lshl_add_u32 v8, v8, 3, v9\nv_lshlrev_b32 v8, 7, v8")
        a("v_bfe_u32 v9, v1, 3, 2\nv_lshl_add_u32 v8, v9, 5, v8\nv_and_b32 v9, 3, v1\nv_lshl_add_u32 v10, v9, 3, v8")
        for nt in range(1, 4):
            a(f"v_xor_b32 v{10 + nt}, {32 * nt}, v10")
        for nt in range(4):
            a(f"v_add_u32 v{40 + nt}, {L_U}, v{10 + nt}")
        a(f"s_lshr_b32 s{sE}, s{sJ}, 2\ns_and_b32 s{sF}, s{sJ}, 3\ns_lshl_b32 s{sF}, s{sF}, 3\ns_add_u32 s{sF}, s{sF}, s{sW}")
        self.flag_store(FL3, sE, sF)
        self.bump_epoch()
        a(f"s_bfe_u32 s{sB}, s{sJ}, 0x30001\ns_lshl_b32 s{sB}, s{sB}, 7\ns_add_u32 s{sB}, s{sB}, {L_MOD + 5 * 1024}\nv_and_b32 v9, 7, v1")
        a(f"v_lshl_add_u32 v9, v9, 4, s{sB}\nds_read_b128 v[2:5], v9")
        self.wd_addr()
        a("s_waitcnt lgkmcnt(0)\ns_barrier")

    def spare(self):
        a = self.a
        a(f"s_sub_u32 s{sE}, s{sJ}, 28\nv_lshlrev_b32 v8, 7, v0")
        k = 0
        for task in self.o["spare"]:
            if task == "z":
                a(f"s_mul_i32 s{sA}, s{sXG}, {ZG}\ns_mul_i32 s{sB}, s{sE}, 98304\ns_add_u32 s{sA}, s{sA}, s{sB}\ns_add_u32 s{sA}, s{sA}, {Z + 0x80000}")
                a(f"buffer_load_dword v{16 + k}, v8, {srd(rWS)}, s{sA} offen sc1\nv_add_u32 v9, 65536, v8\nv_min_u32 v9, {98304 - 128}, v9")
                a(f"buffer_load_dword v{17 + k}, v9, {srd(rWS)}, s{sA} offen sc1")
            elif task == "y":
                a(f"s_mul_i32 s{sA}, s{sXG}, {ZG}\ns_lshl_b32 s{sB}, s{sE}, 17\ns_add_u32 s{sA}, s{sA}, s{sB}\ns_add_u32 s{sA}, s{sA}, {Z}")
                a(f"buffer_load_dword v{16 + k}, v8, {srd(rWS)}, s{sA} offen sc1\nv_add_u32 v9, 65536, v8")
                a(f"buffer_load_dword v{17 + k}, v9, {srd(rWS)}, s{sA} offen sc1")
            elif task == "d":
                n = (self.sp_end - self.wd_done) // 4
                a(f"s_mul_i32 s{sA}, s{sE}, {n}\ns_add_u32 s{sA}, s{sA}, {self.wd_done}\ns_lshl_b32 s{sA}, s{sA}, 7")
                for i in range(0, n, 512):
                    a(f"v_add_u32 v9, {128 * i}, v8\nv_min_u32 v9, {128 * (n - 1)}, v9\nv_add_u32 v9, s{sA}, v9\nglobal_load_dword v{16 + k}, v9, {sp(sWD)}")
            elif isinstance(task, tuple):
                a(f"s_add_u32 s{sA}, s{sXG}, {task[1]}\ns_and_b32 s{sA}, s{sA}, 7\ns_lshl_b32 s{sA}, s{sA}, 2\ns_add_u32 s{sA}, s{sA}, s{sE}\ns_mul_i32 s{sA}, s{sA}, 57344")
                a(f"v_min_u32 v9, {57344 - 128}, v8\nv_add_u32 v9, s{sA}, v9\nglobal_load_dword v{16 + k}, v9, {sp(sWD)}")
            elif task == "o":
                a(f"s_lshl_b32 s{sA}, s{sXG}, 2\ns_add_u32 s{sA}, s{sA}, s{sE}\ns_lshl_b32 s{sA}, s{sA}, 16\nv_add_u32 v9, s{sA}, v8")
                a(f"global_load_dword v{16 + k}, v9, {sp(sOUT)} sc1")
            else:
                a(f"s_add_u32 s{sA}, s{sXG}, {task}\ns_and_b32 s{sA}, s{sA}, 7\ns_lshl_b32 s{sA}, s{sA}, 2\ns_add_u32 s{sA}, s{sA}, s{sE}\ns_mul_i32 s{sA}, s{sA}, 57344")
                a(f"v_min_u32 v9, {57344 - 128}, v8\nbuffer_load_dword v{16 + k}, v9, {srd(rG)}, s{sA} offen\nbuffer_load_dword v{17 + k}, v9, {srd(rU)}, s{sA} offen")
            a("s_barrier")
            k += 2
        a("s_waitcnt vmcnt(0)")

    def gemm1(self):
        a = self.a
        lsp, lg2, lyo = a.label("work"), a.label("g2"), a.label("young")
        a(f"s_cmp_lt_u32 s{sJ}, 28\ns_cbranch_scc1 {lsp}")
        n0 = self.nst
        self.stamp()
        self.sp_end = 14336 - 28 * 8 * self.o["wk_lines"]
        self.spare()
        self.stamp()
        for i in range(14):
            a(self.wd_piece(i))
        self.wd_setup()
        a("s_waitcnt vmcnt(0)\ns_barrier")
        for x in self.wd_reads():
            a(x)
        self.gemm2_setup()
        self.stamp()
        self.nst = n0
        a(f"s_branch {lg2}\n{lsp}:")
        self.nb = self.o.get("redo", self.nb)
        nh = self.o["nb4"]
        for b in range(self.nb, self.nb + nh):
            self.w1_block(b)
        a(f"s_lshl_b32 s{sF}, s{sXG}, 3\ns_add_u32 s{sF}, s{sF}, s{sW}\ns_lshl_b32 s{sF}, s{sF}, 15\ns_add_u32 s{sF}, s{sF}, {R1}")
        wk = self.o["wk_lines"]
        a(f"s_lshl_b32 s{sA}, s{sJ}, 3\ns_add_u32 s{sA}, s{sA}, s{sW}\ns_mul_i32 s{sA}, s{sA}, {wk}\ns_add_u32 s{sA}, s{sA}, {self.sp_end}")
        a(f"v_min_u32 v45, {max(wk - 1, 0)}, v1\nv_add_lshl_u32 v45, v45, s{sA}, 7\nv_add_u32 v49, {32 * 3584}, v14")
        a("v_and_b32 v8, 31, v1\nv_lshlrev_b32 v8, 2, v8")
        self.flag_poll(FL3, sW, 8)
        self.stamp()
        n0 = self.nst
        a(f"s_cmp_ge_u32 s{sW}, 4\ns_cbranch_scc1 {lyo}")
        self.g1_group(0)
        a(f"s_branch {lg2}\n{lyo}:")
        self.nst = n0
        self.g1_group(1)
        a(f"{lg2}:")

    def g1_group(self, grp):
        a = self.a
        o = self.o
        ACC, HB, WF = 80, 144, 16
        DEPTH, D0, AHEAD = 14, o["d0"], o["ahead"]
        SLOTS = AHEAD + 2
        wslot = lambda n: ([16, 20, 24, 28, 32, 36, 52, 56, 60, 64])[n % SLOTS]
        vm = []

        def wait(*tags):
            last = max(i for i, t in enumerate(vm) if t in tags)
            a(f"s_waitcnt vmcnt({len(vm) - 1 - last})")

        def hl(kk, rt):
            if kk % 2 == 0 and rt == 0:
                a(f"s_add_u32 s{sE}, s{sXG}, {kk // 2}\ns_and_b32 s{sE}, s{sE}, 7\ns_lshl_b32 s{sE}, s{sE}, 10\ns_add_u32 s{sE}, s{sE}, s{sF}")
            a(f"buffer_load_dwordx4 {vr(HB + (kk % DEPTH) * 8 + rt * 4, 4)}, v{46 + rt}, {srd(rWS)}, s{sE} offen offset:{512 * (kk & 1)} sc1")
            vm.append(("h", kk))

        def wr(n):
            kk, t = divmod(n, 8)
            ad = (10, 40)[t & 1] + (t >> 1)
            return [f"ds_read_b64_tr_b16 {vr(wslot(n) + 2 * u, 2)}, v{ad} offset:{kk * 4096 + u * 512}" for u in range(2)]

        todo = [(kk, rt) for kk in range(16) for rt in range(2)]
        for _ in range(2 * D0):
            hl(*todo.pop(0))
        for n in range(AHEAD):
            for x in wr(n):
                a(x)
        bars = o["bars"]
        mine = [b[grp] for b in bars]
        nb, vis = self.nb + o["nb4"], self.nb
        hs = o["h_sched"][grp]
        w_at = []
        pieces = [(b, m, s2) for b in range(nb, 8) for m in range(2) for s2 in ((0,) if o["w_own"] else (0, 1))]
        if grp and not o["w_own"]:
            pieces = []
        ws = list(o["w_sched"][grp]) + [0] * 16
        early, top = list(range(10)), list(range(10, 14))
        fb = min(i for i, b in enumerate(bars) if min(b) >= 10)
        slots = {0: (), 1: (0,), 2: (0, 4), 3: (0, 3, 6), 4: (0, 2, 4, 6), 5: (0, 1, 3, 5, 6), 6: (0, 1, 2, 4, 5, 6)}
        for kk in range(16):
            if kk in mine:
                i = mine.index(kk)
                vis = max(vis, min(8, (max(bars[i + 1]) + 2) // 2) if i + 1 < len(bars) else 8)
                assert all(p[0] >= vis for p in pieces)
                wait(("h", kk), ("w", vis - 1))
                a("s_barrier")
            else:
                wait(("h", kk))
            assert vis > min(7, (kk + 1) // 2)
            for t in range(8):
                n = kk * 8 + t
                left = min(128, n + AHEAD) - n - 1
                a(f"s_waitcnt lgkmcnt({2 * left})")
                for rt in range(2):
                    acc = vr(ACC + (rt * 8 + t) * 4, 4)
                    c = "0" if kk == 0 else acc
                    a(f"v_mfma_f32_16x16x32_bf16 {acc}, {vr(wslot(n), 4)}, {vr(HB + (kk % DEPTH) * 8 + rt * 4, 4)}, {c}")
                    if n + AHEAD < 128:
                        a(wr(n + AHEAD)[rt])
                if t in slots[hs[min(kk, len(hs) - 1)]] and todo and todo[0][0] < kk + DEPTH:
                    hl(*todo.pop(0))
                if pieces and t in {0: (), 1: (5,), 2: (1, 5), 3: (1, 5, 7), 4: (1, 3, 5, 7)}[ws[kk]]:
                    b, m, s2 = pieces.pop(0)
                    if m == 0 and s2 == 0:
                        a(f"s_add_u32 s{sWO}, s{sXG}, {b}\ns_and_b32 s{sWO}, s{sWO}, 7\ns_mul_i32 s{sWO}, s{sWO}, {64 * 3584}")
                    a(f"s_add_u32 m0, s{sWP}, {(L_G, L_U)[m] + b * 8192 + s2 * 4096}\ns_nop 0")
                    a(f"buffer_load_dwordx4 v{(14, 49)[s2]}, {srd((rG, rU)[m])}, s{sWO} offen lds")
                    vm.append(("w", b))
                if t == 7 and o["wk_lines"] and kk == o["wk_at"][grp]:
                    a(f"global_load_dword v44, v45, {sp(sWD)}")
                    vm.append("d")
                if kk >= o["top_at"][grp] and t in o["wd_slots"] and top:
                    a(self.wd_piece(top.pop(0)))
                    vm.append("p")
                elif kk >= mine[fb] and t in o["wd_slots"] and early:
                    a(self.wd_piece(early.pop(0)))
                    vm.append("p")
        assert not todo and not pieces and not early and not top
        self.stamp()
        a(f"v_mov_b32 v48, {f2h(C1 / ALPHA)}\nv_lshlrev_b32 v46, 4, v1")
        a(f"s_mul_i32 s{sA}, s{sW}, {2 * 57344}\ns_lshl_b32 s{sB}, s{sJ}, 11\ns_add_u32 s{sA}, s{sA}, s{sB}")
        a(f"s_mul_i32 s{sB}, s{sXG}, {ZG}\ns_add_u32 s{sA}, s{sA}, s{sB}\ns_add_u32 s{sE}, s{sA}, {Z}\ns_add_u32 s{sF}, s{sE}, 57344")
        self.wd_setup()
        reads = self.wd_reads()
        eb = o["end_bar"][grp]
        for q in range(4):
            if q == eb:
                a(f"s_waitcnt vmcnt({q})\ns_barrier")
            n0 = len(a.lines)
            self.geglu(ACC + 16 * q, 52, 64 + 4 * q, q < o["scalar_q"][grp])
            if q >= eb:
                body, out = a.lines[n0:], []
                k = -(-len(reads) // (4 - q))
                for i, ln in enumerate(body):
                    while len(out) - i < k * (i + 1) // len(body) and reads:
                        out.append(reads.pop(0))
                    out.append(ln)
                a.lines[n0:] = out
            st = f"buffer_store_dwordx4 {vr(64 + 4 * q, 4)}, v46, {srd(rWS)}, s{(sE, sF)[q >> 1]} offen offset:{1024 * (q & 1)}"
            if o["hh_sc1"]:
                a(st + " sc1")
            else:
                self.local_stores([st])
        assert not reads
        self.stamp()
        self.gemm2_setup()
        self.flag_store(FL4, sW, sJ)

    def geglu(self, base, T, O, scalar):
        a = self.a
        el = [(base + 8 * tt + e, base + 8 * tt + 4 + e, T + 4 * tt + e) for tt in range(2) for e in range(4)]
        pr = el[::2]
        if scalar:
            for g, u, t in el:
                a(f"v_fma_f32 v{t}, v{g}, v{g}, v48")
            for g, u, t in el:
                a(f"v_mul_f32 v{t}, v{t}, v{g}")
            for g, u, t in el:
                a(f"v_exp_f32 v{t}, -v{t}")
            for g, u, t in el:
                a(f"v_mul_f32 v{u}, v{u}, v{g}")
            for g, u, t in el:
                a(f"v_add_f32 v{t}, 1.0, v{t}")
        else:
            for g, u, t in pr:
                a(f"v_pk_fma_f32 {vr(t, 2)}, {vr(g, 2)}, {vr(g, 2)}, v[48:49] op_sel_hi:[1,1,0]")
            for g, u, t in pr:
                a(f"v_pk_mul_f32 {vr(t, 2)}, {vr(t, 2)}, {vr(g, 2)} neg_lo:[0,1] neg_hi:[0,1]")
            for g, u, t in el:
                a(f"v_exp_f32 v{t}, v{t}")
            for g, u, t in pr:
                a(f"v_pk_mul_f32 {vr(u, 2)}, {vr(u, 2)}, {vr(g, 2)}")
            for g, u, t in pr:
                a(f"v_pk_add_f32 {vr(t, 2)}, {vr(t, 2)}, 1.0 op_sel_hi:[1,0]")
        for g, u, t in el:
            a(f"v_rcp_f32 v{t}, v{t}")
        if scalar:
            for g, u, t in el:
                a(f"v_mul_f32 v{u}, v{u}, v{t}")
        else:
            for g, u, t in pr:
                a(f"v_pk_mul_f32 {vr(u, 2)}, {vr(u, 2)}, {vr(t, 2)}")
        for d, (g, u, t) in enumerate(pr):
            a(f"v_cvt_pk_bf16_f32 v{O + d}, v{u}, v{u + 1}")

    WD = 144

    def wd_addr(self):
        a = self.a
        self.mk_srd(rD, sWD, 1792 * 1024)
        a("v_lshrrev_b32 v9, 3, v1\nv_lshrrev_b32 v50, 4, v1\nv_lshlrev_b32 v50, 1, v50\nv_and_b32 v8, 7, v1\nv_xor_b32 v50, v50, v8")
        a("v_lshlrev_b32 v9, 10, v9\nv_lshl_add_u32 v50, v50, 4, v9")
        a(f"s_and_b32 s{sA}, s{sJ}, 1\ns_lshl_b32 s{sA}, s{sA}, 2\ns_and_b32 s{sB}, s{sW}, 3\ns_add_u32 s{sA}, s{sA}, s{sB}\ns_mul_i32 s{sA}, s{sA}, {224 * 1024}")
        a(f"s_bfe_u32 s{sB}, s{sJ}, 0x30001\ns_lshl_b32 s{sB}, s{sB}, 7\ns_add_u32 s{sA}, s{sA}, s{sB}")
        a(f"s_and_b32 s{sB}, s{sW}, 4\ns_lshl_b32 s{sB}, s{sB}, 12\ns_add_u32 s{sDS}, s{sA}, s{sB}")
        a(f"s_and_b32 s{sA}, s{sW}, 2\ns_lshl_b32 s{sA}, s{sA}, 15\ns_and_b32 s{sB}, s{sW}, 1\ns_lshl_b32 s{sB}, s{sB}, 12\ns_add_u32 s{sDL}, s{sA}, s{sB}")
        a(f"s_and_b32 s{sB}, s{sW}, 4\ns_lshl_b32 s{sB}, s{sB}, 9\ns_add_u32 s{sDM}, s{sDL}, s{sB}")
        a(f"s_and_b32 s{sA}, s{sW}, 3\ns_lshl_b32 s{sA}, s{sA}, 13\ns_add_u32 s{sA}, s{sA}, s{sB}\ns_add_u32 s{sDT}, s{sA}, {L_PART}")

    def wd_piece(self, i):
        f, h = divmod(i, 2)
        m0 = f"s{sDM}, {8192 * f + 1024 * h}" if f < 5 else f"s{sDT}, {4096 * (f - 5) + 1024 * h}"
        return (f"s_add_u32 m0, {m0}\ns_add_u32 s{sGt}, s{sDS}, {32768 * f + 8192 * h}\n"
                f"buffer_load_dwordx4 v50, {srd(rD)}, s{sGt} offen lds")

    def wd_setup(self):
        a = self.a
        a(f"v_lshrrev_b32 v9, 2, v1\nv_bfe_u32 v8, v1, 3, 2\nv_lshlrev_b32 v9, 7, v9\ns_and_b32 s{sA}, s{sDT}, 0xfffff000")
        a(f"v_lshl_add_u32 v9, v8, 5, v9\nv_and_b32 v8, 3, v1\nv_lshl_add_u32 v9, v8, 3, v9\nv_add_u32 v36, s{sDL}, v9\nv_add_u32 v40, s{sA}, v9")
        for nt in range(1, 4):
            a(f"v_xor_b32 v{36 + nt}, {32 * nt}, v36\nv_xor_b32 v{40 + nt}, {32 * nt}, v40")

    def wd_reads(self):
        return [f"ds_read_b64_tr_b16 {vr(self.WD + (f * 4 + nt) * 4 + 2 * u, 2)}, v{(36, 40)[f >= 5] + nt} offset:{(8192 * f if f < 5 else 4096 * (f - 5)) + 2048 * u}"
                for f in range(7) for nt in range(4) for u in range(2)]

    G2 = dict(HB=16, ACC=72, GB=104, RD=112, XU=48)

    def gemm2_setup(self):
        a = self.a
        GB = self.G2["GB"]
        sQ4, sRO, sOWN = sKW, sWP, sWO
        a(f"s_and_b32 s{sQ4}, s{sW}, 3\ns_and_b32 s{sA}, s{sW}, 4\ns_lshr_b32 s{sB}, s{sJ}, 4\ns_lshl_b32 s{sB}, s{sB}, 1\ns_add_u32 s{sDL}, s{sA}, s{sB}")
        a(f"s_and_b32 s{sA}, s{sJ}, 1\ns_add_u32 s{sRO}, s{sDL}, s{sA}\ns_lshl_b32 s{sA}, s{sA}, 2\ns_add_u32 s{sA}, s{sA}, s{sQ4}\ns_mul_i32 s{sE}, s{sA}, 7")
        a(f"s_lshr_b32 s{sA}, s{sE}, 1\nv_and_b32 v8, 3, v1\nv_add_u32 v8, s{sA}, v8\nv_bfe_u32 v9, v1, 2, 1\nv_lshlrev_b32 v8, 2, v8\nv_lshl_add_u32 v62, v9, 7, v8")
        a(f"s_mul_i32 s{sB}, s{sXG}, {ZG}\ns_lshl_b32 s{sE}, s{sE}, 10\ns_add_u32 s{sE}, s{sE}, s{sB}\ns_add_u32 s{sE}, s{sE}, {Z}")
        a(f"s_mul_i32 s{sA}, s{sRO}, {2 * 57344}\ns_add_u32 s{sOWN}, s{sE}, s{sA}\ns_xor_b32 s{sA}, s{sRO}, 1\ns_mul_i32 s{sA}, s{sA}, {2 * 57344}\ns_add_u32 s{sGt}, s{sE}, s{sA}")
        a("v_lshlrev_b32 v6, 4, v1\nv_add_u32 v7, 4096, v6")
        a("v_lshrrev_b32 v12, 5, v1\nv_lshl_add_u32 v12, v12, 2, v1\nv_and_b32 v12, 15, v12\nv_and_b32 v13, 48, v1\nv_or_b32 v12, v12, v13")
        a(f"s_lshl_b32 s{sA}, s{sW}, 14\nv_lshl_add_u32 v12, v12, 4, s{sA}\nv_xor_b32 v13, 128, v12")
        a(f"v_lshrrev_b32 v10, 3, v1\nv_and_b32 v11, 7, v1\ns_and_b32 s{sA}, s{sW}, 1\ns_lshl_b32 s{sA}, s{sA}, 3\nv_and_b32 v14, 3, v1\nv_lshl_add_u32 v14, v14, 2, v10")
        a(f"v_add_u32 v14, s{sA}, v14\nv_and_b32 v14, 15, v14\nv_lshl_add_u32 v14, v11, 5, v14")
        a(f"s_and_b32 s{sA}, s{sW}, 4\ns_lshl_b32 s{sA}, s{sA}, 14\ns_and_b32 s{sB}, s{sW}, 2\ns_lshl_b32 s{sB}, s{sB}, 11\ns_add_u32 s{sA}, s{sA}, s{sB}\nv_lshl_add_u32 v14, v14, 4, s{sA}")
        a(f"s_lshl_b32 s{sA}, s{sXG}, 3\ns_add_u32 s{sA}, s{sA}, s{sRO}\ns_lshl_b32 s{sA}, s{sA}, 2\ns_add_u32 s{sA}, s{sA}, s{sQ4}\ns_lshl_b32 s{sA}, s{sA}, 13")
        a(f"s_bfe_u32 s{sB}, s{sJ}, 0x30001\ns_lshl_b32 s{sB}, s{sB}, 7\ns_add_u32 s{sA}, s{sA}, s{sB}")
        a(f"v_lshlrev_b32 v15, 10, v10\nv_lshl_add_u32 v15, v11, 4, v15\nv_add_u32 v15, s{sA}, v15\nv_xor_b32 v10, 0x8000, v15")
        a(f"s_lshl_b32 s{sA}, s{sXG}, 3\ns_add_u32 s{sA}, s{sA}, s{sW}\ns_lshl_b32 s{sA}, s{sA}, 7\ns_add_u32 s{sF}, s{sA}, {FL5}")
        a(f"s_lshl_b32 s{sA}, s{sJ}, 2\nv_mov_b32 v60, s{sA}\nv_xor_b32 v63, 4, v60\nv_mov_b32 v61, s{sT}")
        self.unpack8(GB, 2)
        for e in range(8):
            a(f"v_mul_f32 v{GB + e}, {f2h(ALPHA ** -2)}, v{GB + e}")

    def gemm2(self):
        a = self.a
        HB, ACC, GB, RD, XU = (self.G2[k] for k in ("HB", "ACC", "GB", "RD", "XU"))
        RING, R0 = self.o["ring"], self.o["r0"]
        assert RING <= 8
        sOWN = sWO
        vm = []

        def load(n):
            i, f = divmod(n, 7)
            if f == 0:
                a(f"s_add_u32 s{sE}, s{(sGt, sOWN)[i >> 1]}, {(i & 1) * 57344}")
            a(f"buffer_load_dwordx4 {vr(HB + (n % RING) * 4, 4)}, v{6 + (f >> 2)}, {srd(rWS)}, s{sE} offen offset:{1024 * (f & 3)} sc1")
            vm.append(n)

        def wait(tag):
            a(f"s_waitcnt vmcnt({len(vm) - 1 - vm.index(tag)})")

        def dump(i, nt):
            a(f"ds_write_b128 v{12 + (nt & 1)}, {vr(ACC + ((i & 1) * 4 + nt) * 4, 4)} offset:{(i >> 1) * 8192 + (i & 1) * 4096 + nt * 1024}")

        def finalise(ph, xtag):
            for q in range(4):
                for h in range(2):
                    a(f"ds_read_b128 {vr(RD + 8 * q + 4 * h, 4)}, v14 offset:{q * 16384 + ph * 8192 + 256 * h}")
            for q in range(1, 4):
                a(f"s_waitcnt lgkmcnt({2 * (3 - q)})")
                for e in range(8):
                    a(f"v_add_f32 v{RD + e}, v{RD + e}, v{RD + 8 * q + e}")
            wait(xtag)
            self.unpack8(XU, 2)
            for e in range(8):
                a(f"v_fmac_f32 v{XU + e}, v{RD + e}, v{GB + e}")
            for e in range(4):
                a(f"v_cvt_pk_bf16_f32 v{56 + e}, v{XU + 2 * e}, v{XU + 2 * e + 1}")

        a("s_waitcnt lgkmcnt(0)")
        self.flag_poll(FL4, sDL, 62)
        self.stamp()
        for n in range(R0):
            load(n)
        nxt = R0
        NF, NS = self.o["fin_at"], None
        for n in range(28):
            i, f = divmod(n, 7)
            wait(n)
            if NS is not None and "flag" not in vm and vm.index(n) > NS:
                a("s_mov_b64 exec, 1")
                self.local_stores([f"buffer_store_dword v61, v60, {srd(rWS)}, s{sF} offen"])
                a("s_mov_b64 exec, -1")
                vm.append("flag")
            if n == self.o["poll_at"]:
                assert nxt == 28 and "flag" in vm
                a(f"buffer_load_dword v9, v63, {srd(rWS)}, s{sF} offen sc1")
                vm.append("poll")
            for nt in range(4):
                acc = vr(ACC + ((i & 1) * 4 + nt) * 4, 4)
                c = "0" if f == 0 else acc
                a(f"v_mfma_f32_16x16x32_bf16 {acc}, {vr(self.WD + (f * 4 + nt) * 4, 4)}, {vr(HB + (n % RING) * 4, 4)}, {c}")
                if nt in (0, 2) and nxt < 28 and nxt < n + RING:
                    load(nxt)
                    nxt += 1
                if i >= 1 and f in (1, 2) and nt in (1, 3):
                    dump(i - 1, 2 * (f - 1) + (nt >> 1))
            if n == 7:
                a("s_barrier")
            if n == 8:
                a(f"global_load_dwordx4 v[2:5], v10, {sp(sOUT)} sc1")
                vm.append("x1")
            if n == NF:
                a("s_waitcnt lgkmcnt(0)\ns_barrier")
                finalise(0, "x1")
                self.local_stores([f"global_store_dwordx4 v10, v[56:59], {sp(sOUT)}"])
                vm.append("t")
                NS = len(vm) - 1
            elif f == 5:
                a("s_waitcnt lgkmcnt(0)")
        self.stamp()
        lok = a.label("got")
        a(f"s_waitcnt vmcnt(0)\nv_cmp_ne_u32 vcc, s{sT}, v9\ns_cbranch_vccz {lok}")
        self.flag_poll(FL5, sW, 63)
        a(f"{lok}:\nglobal_load_dwordx4 v[2:5], v15, {sp(sOUT)} sc1")
        vm.append("x2")
        for nt in range(4):
            dump(3, nt)
        a("s_waitcnt lgkmcnt(0)\ns_barrier")
        finalise(1, "x2")
        a(f"global_store_dwordx4 v15, v[56:59], {sp(sOUT)}")
        if self.stamps:
            a("s_waitcnt vmcnt(0)")
        self.stamp()

    def build(self):
        a = self.a
        done = False
        for name, fn in (("p0", self.phase0), ("conv", self.conv), ("p2", self.p2), ("g1", self.gemm1), ("g2", self.gemm2)):
            fn()
            if self.maybe_stop(name):
                done = True
                break
        if not done:
            self.end()
        a("L_exit:\nL_last:\ns_endpgm")
        ref = open(f"cdna_kernels/{NAME}.s.ref").read().split("\n")
        head = [ln for ln in ref if ln.startswith(";") and "@launch" not in ln and "Override" not in ln and "grid=ceil" not in ln]
        txt = "\n".join(head) + f"\n; @launch grid=(256,1,1) block=(512,1,1) lds={LDS_BYTES}\n"
        txt += f'.amdgcn_target "amdgcn-amd-amdhsa--gfx950"\n.text\n.globl {NAME}_kernel\n.p2align 8\n.type {NAME}_kernel,@function\n{NAME}_kernel:\n'
        txt += a.finish()
        txt += f""".section .rodata,"a"
.p2align 6
.amdhsa_kernel {NAME}_kernel
  .amdhsa_next_free_vgpr 256
  .amdhsa_next_free_sgpr 102
  .amdhsa_accum_offset 256
  .amdhsa_group_segment_fixed_size 0
  .amdhsa_kernarg_size 120
  .amdhsa_user_sgpr_count 2
  .amdhsa_user_sgpr_kernarg_segment_ptr 1
  .amdhsa_system_sgpr_workgroup_id_x 1
  .amdhsa_float_denorm_mode_32 3
.end_amdhsa_kernel
"""
        return txt


if __name__ == "__main__":
    import argparse
    ap = argparse.ArgumentParser()
    ap.add_argument("out")
    ap.add_argument("--stop")
    ap.add_argument("--stamps", action="store_true")
    ap.add_argument("--slow", action="store_true")
    ap.add_argument("--opt", default="")
    o = ap.parse_args()
    opt = eval(f"dict({o.opt})")
    open(o.out, "w").write(Gen(o.stop, o.stamps, o.slow, **opt).build())
```
